```python
import torch

def _softmax(x, axis=-1):
    return torch.softmax(x, dim=axis)
def _gelu(x):
    return torch.nn.functional.gelu(x, approximate="tanh")
def _silu(x):
    return torch.nn.functional.silu(x)
def _sigmoid(x):
    return torch.sigmoid(x)
def _layernorm(x, axis=-1, eps=1e-5):
    m = x.mean(dim=axis, keepdim=True)
    v = x.var(dim=axis, keepdim=True, unbiased=False)
    return (x - m) / torch.sqrt(v + eps)
def _scatter_add(tgt, idx, src, axis=0):
    return tgt.clone().index_add_(axis, idx, src)
def _segment_sum(src, seg, n):
    out = torch.zeros((n,) + src.shape[1:], dtype=src.dtype)
    return out.index_add_(0, seg, src)
def _pad(x, pw):
    flat = tuple(v for pair in reversed(pw) for v in pair)
    return torch.nn.functional.pad(x, flat)

kernel_name = 'standalone__dcn_v2_cross__recsys'

def setup_inputs():

    _w = (lambda a: (lambda t: t.to(torch.bfloat16) if t.is_floating_point() else t)(torch.as_tensor(a)))
    B, F, D, L = 16384, 26, 16, 6
    Din = min(F * D, 1024)
    return {
        "x0": _w((lambda *s: torch.randn(*s, dtype=torch.bfloat16) * 0.05)(B, Din)),
        "ws": _w((lambda *s: torch.randn(*s, dtype=torch.bfloat16) * 0.05)(L, Din, Din)),
        "bs": _w((lambda *s: torch.randn(*s, dtype=torch.bfloat16) * 0.05)(L, Din)),
    }

def reference(x0, ws, bs):
    x = x0
    for l in range(ws.shape[0]):
        x = x0 * (x @ ws[l] + bs[l]) + x
    return x
```

```python
import re

def regs(p, b, n=1):
    return [f"{p}{b+i}" for i in range(n)]

def rng(p, b, n):
    return f"{p}{b}" if n == 1 else f"{p}[{b}:{b+n-1}]"

class I:
    __slots__ = ("text", "kind", "rd", "wr", "srcc", "tag", "pos", "layer", "name")
    def __init__(self, text, kind, rd=(), wr=(), srcc=(), tag=None, name=None):
        self.text, self.kind = text, kind
        self.rd, self.wr, self.srcc = list(rd), list(wr), list(srcc)
        self.tag, self.name = tag, name
        self.pos = None; self.layer = None
    def clone(self):
        c = I(self.text, self.kind, self.rd, self.wr, self.srcc, self.tag, self.name)
        c.pos = self.pos
        return c
    @property
    def vm(self): return self.kind in ("G", "B", "T")
    @property
    def lgkm(self): return self.kind in ("D", "X")

class Wait(I):
    def __init__(self, vm=None, lg=None):
        super().__init__("", "W"); self.vmn = vm; self.lgn = lg
    __slots__ = ("vmn", "lgn")
    def render(self):
        p = []
        if self.vmn is not None: p.append(f"vmcnt({self.vmn})")
        if self.lgn is not None: p.append(f"lgkmcnt({self.lgn})")
        return "s_waitcnt " + " ".join(p) if p else None

def insert_waits(stream):
    vmq, lgq = [], []
    vm_done, lg_done = 0, 0
    pend = {}
    ph = None; ph_vm = ph_lg = 0
    for ins in stream:
        if isinstance(ins, Wait):
            if ins.vmn is not None: vm_done = max(vm_done, len(vmq) - ins.vmn)
            if ins.lgn is not None: lg_done = max(lg_done, len(lgq) - ins.lgn)
            ph = ins; ph_vm = len(vmq); ph_lg = len(lgq)
            continue
        touched = list(ins.rd) + list(ins.srcc) + list(ins.wr)
        for r in touched:
            if r not in pend: continue
            q, idx = pend[r]
            if r in ins.wr and r not in ins.rd and ((q == 'vm' and ins.vm) or (q == 'lg' and ins.lgkm)):
                continue
            if q == 'vm' and idx >= vm_done:
                assert ph is not None and idx < ph_vm, f"no wait slot for {ins.text} on {r}"
                n = min(ph_vm - idx - 1, 62)
                ph.vmn = n if ph.vmn is None else min(ph.vmn, n)
                vm_done = max(vm_done, ph_vm - n)
            if q == 'lg' and idx >= lg_done:
                assert ph is not None and idx < ph_lg, f"no wait slot for {ins.text} on {r}"
                n = min(ph_lg - idx - 1, 14)
                ph.lgn = n if ph.lgn is None else min(ph.lgn, n)
                lg_done = max(lg_done, ph_lg - n)
        if ins.vm:
            for r in ins.wr: pend[r] = ('vm', len(vmq))
            vmq.append(ins)
        elif ins.lgkm:
            for r in ins.wr: pend[r] = ('lg', len(lgq))
            lgq.append(ins)

def verify_waits(stream):
    nvm = nlg = 0; vm_done = lg_done = 0; pend = {}
    for ins in stream:
        if isinstance(ins, Wait):
            if ins.vmn is not None: vm_done = max(vm_done, nvm - ins.vmn)
            if ins.lgn is not None: lg_done = max(lg_done, nlg - ins.lgn)
            continue
        for r in list(ins.rd) + list(ins.srcc) + list(ins.wr):
            if r in pend:
                q, idx = pend[r]
                if r in ins.wr and r not in ins.rd and ((q == 'vm' and ins.vm) or (q == 'lg' and ins.lgkm)):
                    continue
                ok = idx < (vm_done if q == 'vm' else lg_done)
                assert ok, f"missing wait: {ins.text} reg {r}"
        if ins.vm:
            for r in ins.wr: pend[r] = ('vm', nvm)
            nvm += 1
        elif ins.lgkm:
            for r in ins.wr: pend[r] = ('lg', nlg)
            nlg += 1

def states(ins):
    if isinstance(ins, Wait): return 1 if ins.render() else 0
    if ins.kind == "L": return 0
    m = re.match(r"s_nop (\d+)", ins.text)
    if m: return int(m.group(1)) + 1
    return ins.text.count("\n") + 1

def check_hazards(stream):
    t = 0
    mf_w = {}
    mf_c = {}
    va_w = {}
    st_r = {}
    errs = []
    last_m = -100
    for ins in stream:
        if ins.kind == "M":
            t = max(t, last_m + 4); last_m = t
            for r in ins.rd:
                if r in mf_w and t - mf_w[r] - 1 < 8: errs.append(("mfma->mfma AB", ins.text))
            chain = ins.srcc and ins.srcc == ins.wr
            for r in ins.srcc:
                if not chain and r in mf_w and t - mf_w[r] - 1 < 6: errs.append(("mfma->mfma C", ins.text))
            for r in ins.rd + ins.srcc:
                if r in va_w and t - va_w[r] - 1 < 2: errs.append(("valu->mfma", ins.text))
            for r in ins.wr:
                if r in st_r and t - st_r[r] - 1 < 2: errs.append(("store->mfma war", ins.text))
            for r in ins.wr: mf_w[r] = t
            for r in ins.srcc: mf_c[r] = t
        elif ins.kind in ("V", "D", "X", "G", "B", "T"):
            for r in ins.rd + ins.wr:
                if r in mf_w and t - mf_w[r] - 1 < 10: errs.append((f"mfma->{ins.kind} dist {t-mf_w[r]-1}", ins.text))
            if ins.kind == "V":
                for r in ins.wr:
                    if r in mf_c and t - mf_c[r] - 1 < 3: errs.append(("mfmaC->valu war", ins.text))
                    if r in st_r and t - st_r[r] - 1 < 2: errs.append(("store->valu war", ins.text))
                    va_w[r] = t
            if ins.kind in ("T", "X"):
                for r in ins.rd: st_r[r] = t
        t += states(ins)
    return errs

class Gaps:
    def __init__(self, n):
        self.n = n
        self.g = [[] for _ in range(n)]
    def fits(self, p, ins):
        cur = self.g[p % self.n]
        k = ins.kind
        kinds = [c.kind for c in cur]
        cost = lambda c: 2 if c.kind in ("B", "X", "T") else (c.text.count("\n") + 1)
        if sum(cost(c) for c in cur) + cost(ins) > 2: return False
        if k in ("G", "D") and k in kinds: return False
        if k == "BAR" and any(x in ("D", "X") for x in kinds): return False
        if k in ("D", "X") and "BAR" in kinds: return False
        return True
    def place(self, ins, earliest, latest=None, after=()):
        p = earliest
        for a, d in after: p = max(p, a.pos + d)
        p0 = p
        while not self.fits(p, ins):
            p += 1
            assert p - p0 < self.n, "cannot place " + ins.text
        assert latest is None or p <= latest, f"deadline miss {ins.text}: {p} > {latest}"
        ins.pos = p
        self.g[p % self.n].append(ins)
        return ins
    def ordered(self, p):
        cur = self.g[p]
        return [c for c in cur if c.kind in ("G", "D", "B", "X", "T")] + [c for c in cur if c.kind not in ("G", "D", "B", "X", "T")]

def render(stream):
    out = []
    for ins in stream:
        if isinstance(ins, Wait):
            t = ins.render()
            if t: out.append(t)
        else:
            out.append(ins.text)
    return out
```

```python
from core import *

NM = 340
LAYER_B = 346112
TILE_B = 13312

def XV(j, r): return 4 + (j*4 + r)*4
def X12(r): return 52 + r*4
def X0F(j, r, e): return 68 + (j*4 + r)*8 + e
X0S, XS = 164, 172
def ACC(r): return 180 + 4*r
def HOLD(r): return 196 + 4*r
TT = 212
BIAS, SPEC = 228, 232
VRD = [236, 237, 238, 239]
VRD12, VS, VBIAS = 240, 241, 242
VW = [243, 244, 245, 246]
VPF, VOUT, VOUT12, VPFD = 247, 248, 249, 250
def XA(d, j, r): return ((d-1)*12 + j*4 + r)*4
NRING = 28
def RING(i): return 144 + 4*(i % NRING)
SW = 16
SOWN, SOWN12, STS, SRD, SSPEC, SMASK, SCNT, SPF = 18, 20, 22, 24, 28, 29, 30, 32
def SOUT(r): return 34 + 2*r
GSTR = 16384
L_X12 = 65536
L_BIAS = 69632

def xreg(slot, r):
    if slot == 12: return ('v', X12(r))
    d, j = slot
    return ('v', XV(j, r)) if d == 0 else ('a', XA(d, j, r))

GROUPS_OWN = [[(0,0),(1,0),(2,0),(3,0),12], [(d,1) for d in range(4)], [(d,2) for d in range(4)]]
GROUPS_TS = [[(0,0),(2,0),(0,1),(2,1)], [(0,2),(2,2),12]]
TILES = [0, 'S', 1, 2, 3, 4, 5]

class Item:
    def __init__(self, make, cls):
        self.make, self.cls = make, cls
        self.proto = make(1)
        self.proto.tag = self
    @property
    def pos(self): return self.proto.pos

class Cfg:
    ldflag = " sc1"
    stflag = ""
    lead = None
    pf_pos = 54
    pw_dist = 3
    barA_pos = 286
    unpack_early = 30
    nlayers = 6

def build_schedule(cfg):
    mf = []
    loads = []
    first_use, last_use = {}, {}
    x_first, x_last = {}, {}
    tile_start, acc_end, acc_start, bias_last = {}, {}, {}, {}
    ringidx = {}
    nf = 0
    for t in TILES:
        groups = GROUPS_TS if t == 'S' else GROUPS_OWN
        for grp in groups:
            for slot in grp:
                loads.append((t, slot))
                if not (t == 'S' and slot == 12):
                    ringidx[(t, slot)] = nf; nf += 1
    assert nf == 84
    def wreg(t, slot):
        if t == 'S' and slot == 12: return ('v', SPEC)
        return ('a', RING(ringidx[(t, slot)]))
    m = 0
    for t in TILES:
        groups = GROUPS_TS if t == 'S' else GROUPS_OWN
        tile_start[t] = m
        for gi, grp in enumerate(groups):
            rr = [0,1,2,3] if (t == 'S' or gi % 2 == 0) else [3,2,1,0]
            for ri, r in enumerate(rr):
                ks = grp if ri % 2 == 0 else grp[::-1]
                for ki, slot in enumerate(ks):
                    first = gi == 0 and ki == 0
                    wp, wb = wreg(t, slot); xp, xb = xreg(slot, r)
                    def mk(l, t=t, slot=slot, r=r, first=first, wp=wp, wb=wb, xp=xp, xb=xb):
                        c = BIAS if first else ACC(r)
                        ins = I(f"v_mfma_f32_16x16x32_bf16 {rng('v',ACC(r),4)}, {rng(wp,wb,4)}, {rng(xp,xb,4)}, {rng('v',c,4)}",
                                "M", rd=regs(wp,wb,4)+regs(xp,xb,4), wr=regs('v',ACC(r),4), srcc=regs('v',c,4))
                        exp = {x: ('W', l, t, slot) for x in regs(wp,wb,4)}
                        exp.update({x: ('X', l, slot, r) for x in regs(xp,xb,4)})
                        exp.update({x: (('B', l, t) if first else ('A', l, t, r)) for x in regs('v',c,4)})
                        ins.name = (exp, ('A', l, t, r))
                        return ins
                    mf.append(mk)
                    first_use.setdefault((t, slot), m); last_use[(t, slot)] = m
                    x_first.setdefault((slot, r), m); x_last[(slot, r)] = m
                    if first: acc_start[(t, r)] = m; bias_last[t] = m
                    acc_end[(t, r)] = m
                    m += 1
    assert m == NM
    G = Gaps(NM)
    items = []
    def add(make, cls, earliest, latest=None, after=()):
        it = Item(make, cls)
        G.place(it.proto, earliest, latest, [(a.proto, d) for a, d in after])
        items.append(it)
        return it
    def nxt(t):
        i = TILES.index(t)
        return (TILES[i+1], 0) if i+1 < len(TILES) else (TILES[0], NM)

    ring_order = [x for x in loads if x in ringidx]
    lead = 10**9
    for i, key in enumerate(loads):
        if key in ringidx:
            f = ringidx[key]
            prev = ring_order[(f - NRING) % 84]
            lu = last_use[prev] - (NM if f < NRING else 0)
        else:
            lu = last_use[key] - NM
        lead = min(lead, 4*i - lu)
    if cfg.lead is not None:
        assert cfg.lead <= lead; lead = cfg.lead
    minlead = min(first_use[k] - (4*i - lead) for i, k in enumerate(loads))
    ld_items = {}
    for i, (t, slot) in enumerate(loads):
        wp, wb = wreg(t, slot)
        def mk(l, t=t, slot=slot, wp=wp, wb=wb):
            if t == 'S' and slot == 12:
                ins = I(f"buffer_load_dwordx4 {rng(wp,wb,4)}, v{VRD12}, s[{SRD}:{SRD+3}], s{SSPEC} offen{cfg.ldflag}", "B", wr=regs(wp,wb,4))
                exp = {f"s{SSPEC}": ('s', l)}
            elif slot == 12:
                ins = I(f"global_load_dwordx4 {rng(wp,wb,4)}, v{VRD12}, s[{SOWN12}:{SOWN12+1}]{cfg.ldflag}", "G", wr=regs(wp,wb,4))
                exp = {f"s{SOWN12}": ('s', l, t)}
            else:
                d, j = slot
                sb = STS if t == 'S' else SOWN
                off = f" offset:{j*1024}" if j else ""
                ins = I(f"global_load_dwordx4 {rng(wp,wb,4)}, v{VW[d]}, s[{sb}:{sb+1}]{off}{cfg.ldflag}", "G", wr=regs(wp,wb,4))
                exp = {f"s{sb}": ('s', l, t)}
            ins.name = (exp, ('W', l, t, slot))
            return ins
        ld_items[(t, slot)] = add(mk, 'wload', 4*i - lead, 4*i - lead)

    def upd(reg, delta, tagf, tagt, after, latest, pair=True):
        def mk(l):
            txt = f"s_add_u32 s{reg}, s{reg}, {delta}" + (f"\ns_addc_u32 s{reg+1}, s{reg+1}, 0" if pair else "")
            ins = I(txt, "S", rd=[f"s{reg}"], wr=[f"s{reg}"]); ins.name = ({f"s{reg}": tagf(l)}, tagt(l)); return ins
        return add(mk, 'wupd', after.pos, latest)
    for t in range(6):
        nt = (t + 1) % 6
        delta = TILE_B if t < 5 else LAYER_B - 5*TILE_B
        off = NM if t == 5 else 0
        tf = lambda l, t=t: ('s', l, t)
        tt = lambda l, t=t, nt=nt: ('s', l + (1 if t == 5 else 0), nt)
        upd(SOWN, delta, tf, tt, ld_items[(t, (3, 2))], ld_items[(nt, (0, 0))].pos + off - 1)
        upd(SOWN12, delta, tf, tt, ld_items[(t, 12)], ld_items[(nt, 12)].pos + off - 1)
    upd(STS, LAYER_B, lambda l: ('s', l, 'S'), lambda l: ('s', l+1, 'S'), ld_items[('S', (2, 2))], None)
    upd(SSPEC, LAYER_B, lambda l: ('s', l), lambda l: ('s', l+1), ld_items[('S', 12)], None, pair=False)

    for i, t in enumerate(TILES):
        pt = TILES[i-1]
        e = bias_last[pt] + 2 - (NM if i == 0 else 0)
        def mk(l, t=t):
            off = (6 if t == 'S' else t)*64
            ins = I(f"ds_read_b128 {rng('v',BIAS,4)}, v{VBIAS} offset:{off}", "D", rd=[f"v{VBIAS}"], wr=regs('v',BIAS,4))
            ins.name = ({f"v{VBIAS}": ('vb', l)}, ('B', l, t)); return ins
        lo = max(e, tile_start[t] - 14) if i else e
        b = add(mk, 'bias', lo, tile_start[t] - 6)
        if t == 5: b5 = b
        if t == 0: b0 = b
    def mk(l):
        ins = I(f"v_add_u32 v{VBIAS}, 512, v{VBIAS}", "V", rd=[f"v{VBIAS}"], wr=[f"v{VBIAS}"]); ins.name = ({f"v{VBIAS}": ('vb', l)}, ('vb', l+1)); return ins
    add(mk, 'upd', b5.pos + 1, NM + b0.pos - 1)

    def ep_items(t, order_only=False):
        pass
    xw = {}
    unpack_last = {}
    def epilogue(t, u_earliest):
        j, h = t // 2, t % 2
        nt, off = nxt(t)
        for r in range(4):
            dl = acc_start[(nt, r)] + off - 1
            dst = HOLD(r) if h == 0 else TT + 4*r
            us = []
            for q in range(4):
                def mku(l, j=j, h=h, r=r, q=q, dst=dst, t=t):
                    src = XV(j, r) + q
                    txt = f"v_lshlrev_b32 v{dst+q}, 16, v{src}" if h == 0 else f"v_and_b32 v{dst+q}, s{SMASK}, v{src}"
                    ins = I(txt, "V", rd=[f"v{src}"], wr=[f"v{dst+q}"])
                    ins.name = ({f"v{src}": ('X', l, (0, j), r)}, ('U', l, t, r, q))
                    return ins
                us.append(mku)
            fs = []
            for q in range(4):
                def mkf(l, j=j, h=h, r=r, q=q, dst=dst, t=t):
                    a, b = X0F(j, r, 2*q+h), ACC(r)+q
                    ins = I(f"v_fmac_f32 v{dst+q}, v{a}, v{b}", "V", rd=[f"v{dst+q}", f"v{a}", f"v{b}"], wr=[f"v{dst+q}"])
                    ins.name = ({f"v{dst+q}": ('U', l, t, r, q), f"v{b}": ('A', l, t, r)}, ('F', l, t, r, q))
                    return ins
                fs.append(add(mkf, 'ep', acc_end[(t, r)] + 3, dl))
            if h == 1:
                cs = []
                for q in range(4):
                    def mkc(l, r=r, q=q, t=t):
                        ins = I(f"v_cvt_pk_bf16_f32 v{HOLD(r)+q}, v{HOLD(r)+q}, v{TT+4*r+q}", "V", rd=[f"v{HOLD(r)+q}", f"v{TT+4*r+q}"], wr=[f"v{HOLD(r)+q}"])
                        ins.name = ({f"v{HOLD(r)+q}": ('F', l, t-1, r, q), f"v{TT+4*r+q}": ('F', l, t, r, q)}, ('C', l, t, r))
                        return ins
                    cs.append(add(mkc, 'ep', 0, after=[(fs[3], 0)]))
                def mkx(l, j=j, r=r, t=t):
                    if l == cfg.nlayers - 1:
                        ins = I(f"global_store_dwordx4 v{VOUT}, {rng('v',HOLD(r),4)}, s[{SOUT(r)}:{SOUT(r)+1}] offset:{j*64}{cfg.stflag}", "T", rd=regs('v',HOLD(r),4))
                    else:
                        ins = I(f"ds_write_b128 v{VRD[0]}, {rng('v',HOLD(r),4)} offset:{(j*4+r)*1024}", "X", rd=regs('v',HOLD(r),4), wr=[f"Lx{j}"])
                    ins.name = ({x: ('C', l, t, r) for x in regs('v',HOLD(r),4)}, None)
                    return ins
                xw[(j, r)] = add(mkx, 'ep', 0, after=[(c, 1) for c in cs])
            ep_pending.append((t, r, us, fs))
    ep_pending = []
    for t in (5, 0, 1, 2, 3, 4): epilogue(t, None)

    def mkbar(needs, nm):
        def mk(l):
            ins = I("s_barrier", "BAR", rd=needs); ins.name = ({}, None); return ins
        return mk
    barB = add(mkbar(["Lx2"], 'B'), 'barB', 0, after=[(xw[(2, 3)], 5)])
    def mkread(slot, r):
        def mk(l):
            p, b = xreg(slot, r)
            if slot == 12: txt = f"ds_read_b128 {rng(p,b,4)}, v{VRD12} offset:{r*1024}"
            else: txt = f"ds_read_b128 {rng(p,b,4)}, v{VRD[slot[0]]} offset:{(slot[1]*4+r)*1024}"
            ins = I(txt, "D", wr=regs(p,b,4)); ins.name = ({}, ('X', l+1, slot, r)); return ins
        return mk
    for r in range(4):
        for slot in GROUPS_OWN[2]:
            add(mkread(slot, r), 'xread', max(barB.pos + 1, x_last[(slot, r)] + 1), NM + x_first[(slot, r)] - 6)

    pw = []
    for r in range(4):
        def mk(l, r=r):
            ins = I(f"ds_write_b128 v{VRD[0]}, {rng('v',ACC(r),4)} offset:{12288+r*1024}", "X", rd=regs('v',ACC(r),4), wr=["Lp"])
            ins.name = ({x: ('A', l, 'S', r) for x in regs('v',ACC(r),4)}, None); return ins
        pw.append(add(mk, 'sh', acc_end[('S', r)] + cfg.pw_dist, acc_start[(1, r)] - 2))
    barC = add(mkbar(["Lp"], 'C'), 'barC', 0, after=[(pw[3], 5)])
    pr = []
    for w2 in range(4):
        def mk(l, w2=w2):
            ins = I(f"ds_read_b128 {rng('v',TT+4*w2,4)}, v{VS} offset:{w2*GSTR}", "D", wr=regs('v',TT+4*w2,4))
            ins.name = ({}, ('P', l, w2)); return ins
        pr.append(add(mk, 'sh', barC.pos + 1))
    fm = []
    for h in range(2):
        for q in range(4):
            def mka(l, h=h, q=q):
                a, b = TT+8*h+q, TT+8*h+4+q
                ins = I(f"v_add_f32 v{a}, v{a}, v{b}", "V", rd=[f"v{a}", f"v{b}"], wr=[f"v{a}"])
                ins.name = ({f"v{a}": ('P', l, 2*h), f"v{b}": ('P', l, 2*h+1)}, ('PS', l, h, q)); return ins
            ad = add(mka, 'sh', 0, after=[(pr[2*h+1], 6)])
            def mkf(l, h=h, q=q):
                a = TT+8*h+q
                ins = I(f"v_fmac_f32 v{XS+2*q+h}, v{X0S+2*q+h}, v{a}", "V", rd=[f"v{XS+2*q+h}", f"v{X0S+2*q+h}", f"v{a}"], wr=[f"v{XS+2*q+h}"])
                ins.name = ({f"v{a}": ('PS', l, h, q), f"v{XS+2*q+h}": ('XS', l)}, ('XS', l+1)); return ins
            fm.append(add(mkf, 'sh', 0, after=[(ad, 0)]))
    cv = []
    for q in range(4):
        def mk(l, q=q):
            ins = I(f"v_cvt_pk_bf16_f32 v{TT+12+q}, v{XS+2*q}, v{XS+2*q+1}", "V", rd=[f"v{XS+2*q}", f"v{XS+2*q+1}"], wr=[f"v{TT+12+q}"])
            ins.name = ({f"v{XS+2*q}": ('XS', l+1), f"v{XS+2*q+1}": ('XS', l+1)}, ('CS', l)); return ins
        cv.append(add(mk, 'sh', 0, after=[(f, 0) for f in fm]))
    def mk(l):
        if l == cfg.nlayers - 1:
            ins = I(f"global_store_dwordx4 v{VOUT12}, {rng('v',TT+12,4)}, s[{SOUT(0)}:{SOUT(0)+1}]{cfg.stflag}", "T", rd=regs('v',TT+12,4))
        else:
            ins = I(f"ds_write_b128 v{VS}, {rng('v',TT+12,4)} offset:{L_X12-12288}", "X", rd=regs('v',TT+12,4), wr=["Lx12"])
        ins.name = ({x: ('CS', l) for x in regs('v',TT+12,4)}, None); return ins
    x12w = add(mk, 'sh', 0, after=[(c, 1) for c in cv])

    barA = add(mkbar(["Lx0", "Lx1", "Lx12"], 'A'), 'barA', cfg.barA_pos, after=[(xw[(1, 3)], 5)])
    early = []
    for gi in (0, 1):
        for r in ([0,1,2,3] if gi == 0 else [3,2,1,0]):
            for slot in GROUPS_OWN[gi]:
                early.append((slot, r))
    prev = barA
    for slot, r in early:
        prev = add(mkread(slot, r), 'xread', x_last[(slot, r)] + 1, NM + x_first[(slot, r)] - 6, after=[(prev, 1)])

    for t, r, us, fs in ep_pending:
        j, h = t // 2, t % 2
        if h == 0:
            pj = (j - 1) % 3
            e = xw[(pj, r)].pos + 1 - (NM if j == 0 else 0)
            e = max(e, x_first[((0, j), r)])
        else:
            if j == 0: e = x12w.pos + 1
            else: e = xw[(j-1, r)].pos
        e = max(e, fs[0].pos - cfg.unpack_early)
        for q in range(4):
            add(us[q], 'ep', e, fs[q].pos - 1)

    if cfg.pf_pos is not None:
        def mk(l):
            ins = I(f"global_load_dword v{VPFD}, v{VPF}, s[{SPF}:{SPF+1}]{cfg.ldflag}", "G", wr=[f"v{VPFD}"]); ins.name = ({}, None); return ins
        pf = add(mk, 'pf', cfg.pf_pos)
        def mk(l):
            ins = I(f"s_add_u32 s{SPF}, s{SPF}, {LAYER_B}\ns_addc_u32 s{SPF+1}, s{SPF+1}, 0", "S"); ins.name = ({}, None); return ins
        add(mk, 'pf', pf.pos + 1)
    info = dict(lead=lead, minlead=minlead, barA=barA.pos, barB=barB.pos, barC=barC.pos, x12w=x12w.pos)
    return mf, G, items, info

def check_tags(stream, init):
    cur = dict(init)
    for ins in stream:
        if isinstance(ins, Wait) or ins.name is None: continue
        exp, out = ins.name
        for r, tg in exp.items():
            assert cur.get(r) == tg, f"dataflow: {ins.text}: {r} holds {cur.get(r)}, expected {tg}"
        if out is not None:
            for r in ins.wr: cur[r] = out

def unroll(mf, G, cfg, l0):
    NL = cfg.nlayers
    def keep(it, l):
        if l < l0 or l >= NL: return False
        if l == NL - 1 and it.cls in ('xread', 'barA', 'barB', 'pf', 'upd'): return False
        return True
    pre, stream = [], []
    for T in range(l0 - 1, NL + 1):
        for p in range(NM):
            if l0 <= T < NL:
                ins = mf[p](T); ins.layer, ins.pos = T, p; stream.append(ins)
            w = Wait(); w.layer, w.pos = T, p
            lst = []
            for proto in G.ordered(p):
                it = proto.tag
                l = T - (it.pos // NM)
                if keep(it, l):
                    ins = it.make(l); ins.layer, ins.pos = T, p; ins.tag = it; lst.append(ins)
            if T < l0: pre += lst
            elif T < NL: stream += [w] + lst
            elif lst: stream += [w] + lst
    return pre, stream
```

```python
import sys
from fast import *

KN = "standalone__dcn_v2_cross__recsys_kernel"
WOFF = 65536
LDS_BYTES = L_BIAS + 16384

HEAD = """; DCN-v2 cross network, 6 layers, B=16384, D=416, bf16 (generated by my own scheduling script)
"""
def kd(name, nv, acc, ns=102):
    return f""".amdhsa_kernel {name}
  .amdhsa_next_free_vgpr {nv}
  .amdhsa_next_free_sgpr {ns}
  .amdhsa_accum_offset {acc}
  .amdhsa_group_segment_fixed_size 0
  .amdhsa_kernarg_size 48
  .amdhsa_user_sgpr_count 2
  .amdhsa_user_sgpr_kernarg_segment_ptr 1
  .amdhsa_system_sgpr_workgroup_id_x 1
  .amdhsa_float_denorm_mode_32 3
.end_amdhsa_kernel
"""
for u in range(1024):
    assert (u*24819) >> 22 == u // 169
for u in range(169):
    assert (u*5042) >> 16 == u // 13
for u in range(64):
    assert (u*21846) >> 16 == u // 3

def prepass():
    L = []; A = L.append
    A(".globl prep_kernel\n.p2align 8\n.type prep_kernel,@function\nprep_kernel:")
    A("s_load_dwordx2 s[4:5], s[0:1], 8\ns_load_dwordx2 s[6:7], s[0:1], 40")
    A("v_lshrrev_b32 v1, 6, v0\nv_and_b32 v0, 63, v0\ns_nop 0\nv_readfirstlane_b32 s16, v1")
    A("s_cmp_ge_u32 s2, 254\ns_cbranch_scc1 Lp_end")
    A("s_lshl_b32 s17, s2, 2\ns_add_u32 s17, s17, s16")
    A("s_cmp_ge_u32 s17, 1014\ns_cbranch_scc1 Lp_end")
    A("s_mul_i32 s18, s17, 24819\ns_lshr_b32 s18, s18, 22")
    A("s_mul_i32 s19, s18, 169\ns_sub_u32 s19, s17, s19")
    A("s_mul_i32 s20, s19, 5042\ns_lshr_b32 s20, s20, 16")
    A("s_mul_i32 s21, s20, 13\ns_sub_u32 s21, s19, s21")
    A(f"s_mul_i32 s22, s18, {LAYER_B}")
    A("s_mul_i32 s23, s20, 26624\ns_add_u32 s23, s23, s22\ns_lshl_b32 s24, s21, 6\ns_add_u32 s23, s23, s24\ns_add_u32 s23, s23, 3328")
    A("s_mul_i32 s25, s21, 26624\ns_add_u32 s25, s25, s22\ns_lshl_b32 s24, s20, 10\ns_add_u32 s25, s25, s24")
    A(f"s_add_u32 s25, s25, {WOFF}")
    A("v_lshrrev_b32 v1, 4, v0\nv_and_b32 v2, 15, v0\nv_mul_u32_u24 v1, 6656, v1\nv_lshlrev_b32 v2, 2, v2\nv_add_u32 v1, v1, v2")
    A("v_lshlrev_b32 v3, 4, v0\nv_add_u32 v20, 13312, v3")
    A("s_mov_b32 s26, 0x05040100\ns_mov_b32 s27, 0x07060302")
    A("s_waitcnt lgkmcnt(0)")
    A("s_add_u32 s4, s4, s23\ns_addc_u32 s5, s5, 0\ns_add_u32 s6, s6, s25\ns_addc_u32 s7, s7, 0")
    for e in range(8): A(f"global_load_dword v{4+e}, v1, s[4:5] offset:{(e-4)*832}")
    for p in range(4):
        A(f"s_waitcnt vmcnt({6-2*p})")
        A(f"v_perm_b32 v{12+p}, v{5+2*p}, v{4+2*p}, s26")
        A(f"v_perm_b32 v{16+p}, v{5+2*p}, v{4+2*p}, s27")
    A("global_store_dwordx4 v3, v[12:15], s[6:7]\nglobal_store_dwordx4 v20, v[16:19], s[6:7]")
    A("Lp_end:\ns_endpgm")
    return "\n".join(L)

def R(txt): return I(txt, "S")
def Vv(txt, rd=(), wr=()): return I(txt, "V", rd=rd, wr=wr)

def setup_common(cfg, S):
    A = lambda t: S.append(R(t))
    A("s_load_dwordx8 s[4:11], s[0:1], 0\ns_load_dwordx4 s[12:15], s[0:1], 32")
    A("v_lshrrev_b32 v1, 6, v0\nv_and_b32 v0, 63, v0\ns_nop 0\nv_readfirstlane_b32 s16, v1")
    A("v_lshlrev_b32 v2, 4, v0")
    A("v_and_b32 v3, 15, v0\nv_lshrrev_b32 v1, 4, v0\nv_mul_u32_u24 v3, 832, v3\nv_lshlrev_b32 v1, 4, v1\nv_add_u32 v3, v3, v1")
    for d in range(4):
        A(f"s_add_u32 s42, s16, {d}\ns_and_b32 s42, s42, 3\ns_lshl_b32 s43, s42, 14\ns_mul_i32 s44, s42, 3072")
        A(f"v_add_u32 v{VRD[d]}, s43, v2\nv_add_u32 v{VW[d]}, s44, v2")
    A(f"v_add_u32 v{VRD12}, {L_X12}, v2")
    A(f"s_lshl_b32 s42, s16, 10\ns_add_u32 s42, s42, 12288\nv_add_u32 v{VS}, s42, v2")
    A(f"s_lshl_b32 s42, s16, 12\ns_add_u32 s42, s42, {L_BIAS}\nv_add_u32 v{VBIAS}, s42, v1")
    A(f"s_mul_i32 s42, s16, 192\nv_add_u32 v{VOUT}, s42, v3")
    A(f"s_mul_i32 s42, s16, 13312\nv_add_u32 v3, s42, v3\nv_add_u32 v{VOUT12}, 768, v3")
    A(f"s_lshr_b32 s42, s2, 3\ns_and_b32 s42, s42, 31\ns_lshl_b32 s42, s42, 2\ns_add_u32 s42, s42, s16\ns_mul_i32 s42, s42, 22")
    A(f"v_mul_u32_u24 v{VPF}, 21846, v0\nv_lshrrev_b32 v{VPF}, 16, v{VPF}\nv_add_u32 v{VPF}, s42, v{VPF}\nv_min_u32 v{VPF}, 2703, v{VPF}\nv_lshlrev_b32 v{VPF}, 7, v{VPF}")
    A(f"s_mov_b32 s{SMASK}, 0xffff0000")
    A("s_mul_i32 s45, s2, 53248")

def main_kernel(cfg):
    mf, G, items, info = build_schedule(cfg)
    pre, body = unroll(mf, G, cfg, 0)
    S = []
    A = lambda t: S.append(R(t))
    if cfg.stamp: A("s_memtime s[60:61]\ns_memrealtime s[62:63]")
    A("s_cmp_ge_u32 s2, 256\ns_cbranch_scc1 L_end")
    setup_common(cfg, S)
    A("v_lshrrev_b32 v4, 4, v0\nv_bfe_u32 v5, v0, 2, 2\nv_and_b32 v6, 3, v0")
    A("s_mul_i32 s42, s16, 3\nv_add_u32 v7, s42, v5\nv_cmp_eq_u32 vcc, 3, v5\nv_mov_b32 v8, 12\ns_nop 0\nv_cndmask_b32 v7, v7, v8, vcc")
    A("v_mov_b32 v8, 0.5\nv_mov_b32 v9, 1.0\nv_cndmask_b32 v9, v9, v8, vcc")
    A("s_lshr_b32 s43, s16, 1\ns_lshl_b32 s42, s43, 6\nv_mov_b32 v8, s42\nv_mov_b32 v10, 0\nv_cndmask_b32 v10, v10, v8, vcc")
    A("v_mul_u32_u24 v11, 832, v4\nv_lshlrev_b32 v7, 6, v7\nv_lshlrev_b32 v6, 4, v6\nv_add3_u32 v11, v11, v7, v6")
    A(f"v_lshlrev_b32 v4, 9, v4\nv_lshlrev_b32 v5, 7, v5\nv_add3_u32 v12, v4, v5, v6\ns_lshl_b32 s42, s16, 12\ns_add_u32 s42, s42, {L_BIAS}")
    A("v_add3_u32 v12, v12, v10, s42\nv_xor_b32 v13, 64, v12")
    A("s_waitcnt lgkmcnt(0)")
    A("s_add_u32 s4, s4, s45\ns_addc_u32 s5, s5, 0")
    A("s_lshl_b32 s46, s16, 10")
    for s in range(13):
        dest = (s//3)*GSTR + (s%3)*4096 if s < 12 else L_X12
        A(f"s_add_u32 m0, s46, {dest - s*64}")
        if s == 0: A("s_nop 0")
        else: A(["s_mov_b32 s48, s8", "s_mov_b32 s49, s9", "s_mov_b32 s50, 4992", "s_mov_b32 s51, 0x20000",
                 f"s_add_u32 s{SPF}, s14, {WOFF}\ns_addc_u32 s{SPF+1}, s15, 0",
                 f"s_mul_i32 s42, s16, {6*TILE_B}",
                 f"s_add_u32 s{SOWN}, s{SPF}, s42\ns_addc_u32 s{SOWN+1}, s{SPF+1}, 0",
                 f"s_sub_u32 s{SOWN12}, s{SOWN}, {L_X12-12288}\ns_subb_u32 s{SOWN12+1}, s{SOWN+1}, 0",
                 f"s_add_u32 s42, s43, 24\ns_mul_i32 s42, s42, {TILE_B}",
                 f"s_add_u32 s{STS}, s{SPF}, s42\ns_addc_u32 s{STS+1}, s{SPF+1}, 0",
                 f"s_add_u32 s{SSPEC}, s42, 12288",
                 f"s_mov_b32 s{SRD}, s14\ns_mov_b32 s{SRD+1}, s15\ns_mov_b32 s{SRD+3}, 0x20000"][s-1])
        S.append(I(f"global_load_lds_dwordx4 v3, s[4:5] offset:{s*64}{cfg.xflag}", "G", wr=["Lx0img"]))
    A(f"s_and_b32 s42, s16, 1\ns_cmp_eq_u32 s42, 0\ns_cselect_b32 s{SRD+2}, {WOFF + 6*LAYER_B}, 0")
    S.append(I(f"global_load_dword v{VPFD}, v{VPF}, s[{SPF}:{SPF+1}]{cfg.ldflag}", "G", wr=[f"v{VPFD}"]))
    S.append(I("buffer_load_dwordx4 v[16:19], v11, s[48:51], 0 offen", "B", wr=regs('v',16,4)))
    S.append(I("buffer_load_dwordx4 v[20:23], v11, s[48:51], 0 offen offset:3328", "B", wr=regs('v',20,4)))
    A(f"s_add_u32 s{SPF}, s{SPF}, {LAYER_B}\ns_addc_u32 s{SPF+1}, s{SPF+1}, 0")
    if cfg.codepf:
        A("s_getpc_b64 s[52:53]\nv_lshlrev_b32 v14, 7, v0\ns_lshl_b32 s42, s16, 13\nv_add_u32 v14, s42, v14\nv_min_u32 v14, L_end-L_pc, v14")
        S[-1].text = S[-1].text.replace("s_getpc_b64 s[52:53]", "s_getpc_b64 s[52:53]\nL_pc:")
        S.append(I(f"global_load_dword v15, v14, s[52:53]", "G", wr=["v15"]))
    wl = [x for x in pre if x.tag.cls in ('wload', 'wupd')]
    rest = [x for x in pre if x.tag.cls not in ('wload', 'wupd')]
    S += wl
    for r in range(4):
        A(f"s_add_u32 s42, s45, {r*13312}\ns_add_u32 s{SOUT(r)}, s10, s42\ns_addc_u32 s{SOUT(r)+1}, s11, 0")
    S.append(Wait())
    for rd in range(2):
        b = 16 + 4*rd
        for q in range(4):
            S.append(Vv(f"v_lshlrev_b32 v{24+q}, 16, v{b+q}", rd=[f"v{b+q}"], wr=[f"v{24+q}"]))
            S.append(Vv(f"v_and_b32 v{28+q}, s{SMASK}, v{b+q}", rd=[f"v{b+q}"], wr=[f"v{28+q}"]))
        for q in range(8):
            S.append(Vv(f"v_mul_f32 v{32+8*rd+q}, v9, v{24+q}", rd=[f"v{24+q}"], wr=[f"v{32+8*rd+q}"]))
        S.append(I(f"ds_write_b128 v12, v[{32+8*rd}:{35+8*rd}] offset:{2048*rd}", "X", rd=regs('v',32+8*rd,4), wr=["Lb"]))
        S.append(I(f"ds_write_b128 v13, v[{36+8*rd}:{39+8*rd}] offset:{2048*rd}", "X", rd=regs('v',36+8*rd,4), wr=["Lb"]))
    S.append(Wait())
    S.append(I("s_barrier", "BAR", rd=["Lx0img", "Lb"]))
    if cfg.stamp: A("s_memtime s[64:65]\ns_waitcnt lgkmcnt(0)")
    S += rest
    def rdx(slot, r):
        p, b = xreg(slot, r)
        if slot == 12: txt = f"ds_read_b128 {rng(p,b,4)}, v{VRD12} offset:{r*1024}"
        else: txt = f"ds_read_b128 {rng(p,b,4)}, v{VRD[slot[0]]} offset:{(slot[1]*4+r)*1024}"
        ins = I(txt, "D", wr=regs(p,b,4)); ins.name = ({}, ('X', 0, slot, r)); return ins
    own = [((0, j), r) for j in range(3) for r in range(4)]
    oth = [(s, r) for gi in range(3) for r in range(4) for s in GROUPS_OWN[gi] if (s, r) not in own]
    S.append(I(f"ds_read_b128 {rng('v',TT,4)}, v{VS} offset:{L_X12-12288}", "D", wr=regs('v',TT,4)))
    for s, r in own: S.append(rdx(s, r))
    un = []
    for q in range(4):
        un.append(Vv(f"v_lshlrev_b32 v{X0S+2*q}, 16, v{TT+q}", rd=[f"v{TT+q}"], wr=[f"v{X0S+2*q}"]))
        un.append(Vv(f"v_and_b32 v{X0S+2*q+1}, s{SMASK}, v{TT+q}", rd=[f"v{TT+q}"], wr=[f"v{X0S+2*q+1}"]))
        un.append(Vv(f"v_lshlrev_b32 v{XS+2*q}, 16, v{TT+q}", rd=[f"v{TT+q}"], wr=[f"v{XS+2*q}"]))
        un.append(Vv(f"v_and_b32 v{XS+2*q+1}, s{SMASK}, v{TT+q}", rd=[f"v{TT+q}"], wr=[f"v{XS+2*q+1}"]))
    for (s, r) in own:
        j = s[1]
        for q in range(4):
            un.append(Vv(f"v_lshlrev_b32 v{X0F(j,r,2*q)}, 16, v{XV(j,r)+q}", rd=[f"v{XV(j,r)+q}"], wr=[f"v{X0F(j,r,2*q)}"]))
            un.append(Vv(f"v_and_b32 v{X0F(j,r,2*q+1)}, s{SMASK}, v{XV(j,r)+q}", rd=[f"v{XV(j,r)+q}"], wr=[f"v{X0F(j,r,2*q+1)}"]))
    while oth or un:
        if oth: S.append(rdx(*oth.pop(0)))
        S.append(Wait())
        for _ in range(3):
            if un: S.append(un.pop(0))
    A(f"s_mov_b32 s{SCNT}, {cfg.nlayers-2}")
    S.append(Wait())
    npro = len(S)
    lastm = max(i for i, x in enumerate(body) if x.kind == "M")
    full = S + body
    insert_waits(full)
    init = {f"s{SOWN}": ('s',0,0), f"s{SOWN12}": ('s',0,0), f"s{STS}": ('s',0,'S'), f"s{SSPEC}": ('s',0), f"v{VBIAS}": ('vb',0)}
    init.update({f"v{XS+i}": ('XS',0) for i in range(8)})
    check_tags(full, init)
    SPLIT = cfg.split
    def seg_index(x): return x.layer + (1 if x.pos >= SPLIT else 0)
    segs = {}
    for x in body: segs.setdefault(min(seg_index(x), cfg.nlayers), []).append(x)
    loop = [segs[k] for k in range(1, cfg.nlayers)]
    for sg in loop[1:]:
        assert len(sg) == len(loop[0]) and all(a.text == b.text and a.kind == b.kind for a, b in zip(sg, loop[0]))
    for tup in zip(*loop):
        if isinstance(tup[0], Wait):
            vm = [w.vmn for w in tup if w.vmn is not None]; lg = [w.lgn for w in tup if w.lgn is not None]
            for w in tup:
                w.vmn = min(vm) if vm else None; w.lgn = min(lg) if lg else None
    verify_waits(full)
    errs = check_hazards(full)
    fin = segs[cfg.nlayers]
    if errs:
        i = max(k for k, x in enumerate(fin) if x.kind == "M")
        fin.insert(i+1, R("s_nop 7"))
        full = S + segs[0] + sum(loop, []) + fin
        errs = check_hazards(full)
    assert not errs, errs
    out = [f".globl {KN}\n.p2align 8\n.type {KN},@function\n{KN}:"]
    out += render(S) + render(segs[0])
    if cfg.loopalign: out.append(".p2align 6")
    out.append("L_loop:")
    out += render(loop[0])
    out.append(f"s_sub_u32 s{SCNT}, s{SCNT}, 1\ns_cbranch_scc0 L_loop")
    out += render(fin)
    if cfg.stamp:
        out.append("s_memtime s[66:67]\ns_waitcnt vmcnt(0)\ns_memtime s[68:69]\ns_memrealtime s[70:71]\ns_waitcnt lgkmcnt(0)")
        out.append("s_sub_u32 s64, s64, s60\ns_sub_u32 s66, s66, s60\ns_sub_u32 s68, s68, s60")
        out.append("v_mov_b32 v4, s64\nv_mov_b32 v5, s66\nv_mov_b32 v6, s68\nv_mov_b32 v7, s62\nv_mov_b32 v8, s70")
        out.append(f"s_lshl_b32 s42, s2, 2\ns_add_u32 s42, s42, s16\ns_lshl_b32 s42, s42, 5\ns_add_u32 s42, s42, {4<<20}\nv_mov_b32 v9, s42")
        out.append("s_mov_b64 exec, 1\nglobal_store_dwordx4 v9, v[4:7], s[14:15]\nglobal_store_dword v9, v8, s[14:15] offset:16")
    out.append("L_end:\ns_endpgm")
    return "\n".join(out), info

class C0(Cfg):
    stamp = False
    codepf = True
    xflag = ""
    split = 54
    loopalign = True

def gen(cfg):
    mk, info = main_kernel(cfg)
    txt = HEAD
    txt += f"; @launch kernel=prep_kernel grid=(254,1,1) block=(256,1,1) lds=0\n"
    txt += f"; @launch kernel={KN} grid=(256,1,1) block=(256,1,1) lds={LDS_BYTES}\n"
    txt += '.amdgcn_target "amdgcn-amd-amdhsa--gfx950"\n.text\n'
    txt += mk + "\n" + prepass() + "\n"
    txt += '.section .rodata,"a"\n.p2align 6\n' + kd(KN, 512, 256) + ".p2align 6\n" + kd("prep_kernel", 24, 24, 32)
    return txt, info

if __name__ == "__main__":
    cfg = C0()
    for a in sys.argv[2:]:
        k, v = a.split("=", 1); setattr(cfg, k, eval(v))
    txt, info = gen(cfg)
    open(sys.argv[1], "w").write(txt)
    print(info, len(txt.splitlines()), "lines")
```

```python
import sys
from fast import *

KN = "standalone__dcn_v2_cross__recsys_kernel"
WOFF = 65536
LDS_BYTES = L_BIAS + 16384

HEAD = """; DCN-v2 cross network, 6 layers, B=16384, D=416, bf16 (generated by my own scheduling script)
"""
def kd(name, nv, acc, ns=102):
    return f""".amdhsa_kernel {name}
  .amdhsa_next_free_vgpr {nv}
  .amdhsa_next_free_sgpr {ns}
  .amdhsa_accum_offset {acc}
  .amdhsa_group_segment_fixed_size 0
  .amdhsa_kernarg_size 48
  .amdhsa_user_sgpr_count 2
  .amdhsa_user_sgpr_kernarg_segment_ptr 1
  .amdhsa_system_sgpr_workgroup_id_x 1
  .amdhsa_float_denorm_mode_32 3
.end_amdhsa_kernel
"""
for u in range(1024):
    assert (u*24819) >> 22 == u // 169
for u in range(169):
    assert (u*5042) >> 16 == u // 13
for u in range(64):
    assert (u*21846) >> 16 == u // 3

def prepass():
    L = []; A = L.append
    A(".globl prep_kernel\n.p2align 8\n.type prep_kernel,@function\nprep_kernel:")
    A("s_load_dwordx2 s[4:5], s[0:1], 8\ns_load_dwordx2 s[6:7], s[0:1], 40")
    A("v_lshrrev_b32 v1, 6, v0\nv_and_b32 v0, 63, v0\ns_nop 0\nv_readfirstlane_b32 s16, v1")
    A("s_cmp_ge_u32 s2, 254\ns_cbranch_scc1 Lp_end")
    A("s_lshl_b32 s17, s2, 2\ns_add_u32 s17, s17, s16")
    A("s_cmp_ge_u32 s17, 1014\ns_cbranch_scc1 Lp_end")
    A("s_mul_i32 s18, s17, 24819\ns_lshr_b32 s18, s18, 22")
    A("s_mul_i32 s19, s18, 169\ns_sub_u32 s19, s17, s19")
    A("s_mul_i32 s20, s19, 5042\ns_lshr_b32 s20, s20, 16")
    A("s_mul_i32 s21, s20, 13\ns_sub_u32 s21, s19, s21")
    A(f"s_mul_i32 s22, s18, {LAYER_B}")
    A("s_mul_i32 s23, s20, 26624\ns_add_u32 s23, s23, s22\ns_lshl_b32 s24, s21, 6\ns_add_u32 s23, s23, s24\ns_add_u32 s23, s23, 3328")
    A("s_mul_i32 s25, s21, 26624\ns_add_u32 s25, s25, s22\ns_lshl_b32 s24, s20, 10\ns_add_u32 s25, s25, s24")
    A(f"s_add_u32 s25, s25, {WOFF}")
    A("v_lshrrev_b32 v1, 4, v0\nv_and_b32 v2, 15, v0\nv_mul_u32_u24 v1, 6656, v1\nv_lshlrev_b32 v2, 2, v2\nv_add_u32 v1, v1, v2")
    A("v_lshlrev_b32 v3, 4, v0\nv_add_u32 v20, 13312, v3")
    A("s_mov_b32 s26, 0x05040100\ns_mov_b32 s27, 0x07060302")
    A("s_waitcnt lgkmcnt(0)")
    A("s_add_u32 s4, s4, s23\ns_addc_u32 s5, s5, 0\ns_add_u32 s6, s6, s25\ns_addc_u32 s7, s7, 0")
    for e in range(8): A(f"global_load_dword v{4+e}, v1, s[4:5] offset:{(e-4)*832}")
    for p in range(4):
        A(f"s_waitcnt vmcnt({6-2*p})")
        A(f"v_perm_b32 v{12+p}, v{5+2*p}, v{4+2*p}, s26")
        A(f"v_perm_b32 v{16+p}, v{5+2*p}, v{4+2*p}, s27")
    A("global_store_dwordx4 v3, v[12:15], s[6:7]\nglobal_store_dwordx4 v20, v[16:19], s[6:7]")
    A("Lp_end:\ns_endpgm")
    return "\n".join(L)

def R(txt): return I(txt, "S")
def Vv(txt, rd=(), wr=()): return I(txt, "V", rd=rd, wr=wr)

def setup_common(cfg, S):
    A = lambda t: S.append(R(t))
    A("s_load_dwordx8 s[4:11], s[0:1], 0\ns_load_dwordx4 s[12:15], s[0:1], 32")
    A("v_lshrrev_b32 v1, 6, v0\nv_and_b32 v0, 63, v0\ns_nop 0\nv_readfirstlane_b32 s16, v1")
    A("v_lshlrev_b32 v2, 4, v0")
    A("v_and_b32 v3, 15, v0\nv_lshrrev_b32 v1, 4, v0\nv_mul_u32_u24 v3, 832, v3\nv_lshlrev_b32 v1, 4, v1\nv_add_u32 v3, v3, v1")
    for d in range(4):
        A(f"s_add_u32 s42, s16, {d}\ns_and_b32 s42, s42, 3\ns_lshl_b32 s43, s42, 14\ns_mul_i32 s44, s42, 3072")
        A(f"v_add_u32 v{VRD[d]}, s43, v2\nv_add_u32 v{VW[d]}, s44, v2")
    A(f"v_add_u32 v{VRD12}, {L_X12}, v2")
    A(f"s_lshl_b32 s42, s16, 10\ns_add_u32 s42, s42, 12288\nv_add_u32 v{VS}, s42, v2")
    A(f"s_lshl_b32 s42, s16, 12\ns_add_u32 s42, s42, {L_BIAS}\nv_add_u32 v{VBIAS}, s42, v1")
    A(f"s_mul_i32 s42, s16, 192\nv_add_u32 v{VOUT}, s42, v3")
    A(f"s_mul_i32 s42, s16, 13312\nv_add_u32 v3, s42, v3\nv_add_u32 v{VOUT12}, 768, v3")
    A(f"s_lshr_b32 s42, s2, 3\ns_and_b32 s42, s42, 31\ns_lshl_b32 s42, s42, 2\ns_add_u32 s42, s42, s16\ns_mul_i32 s42, s42, 22")
    A(f"v_mul_u32_u24 v{VPF}, 21846, v0\nv_lshrrev_b32 v{VPF}, 16, v{VPF}\nv_add_u32 v{VPF}, s42, v{VPF}\nv_min_u32 v{VPF}, 2703, v{VPF}\nv_lshlrev_b32 v{VPF}, 7, v{VPF}")
    A(f"s_mov_b32 s{SMASK}, 0xffff0000")
    A("s_mul_i32 s45, s2, 53248")

def main_kernel(cfg):
    mf, G, items, info = build_schedule(cfg)
    pre, body = unroll(mf, G, cfg, 0)
    S = []
    A = lambda t: S.append(R(t))
    if cfg.stamp: A("s_memtime s[60:61]\ns_memrealtime s[62:63]")
    A("s_cmp_ge_u32 s2, 256\ns_cbranch_scc1 L_end")
    setup_common(cfg, S)
    A("v_lshrrev_b32 v4, 4, v0\nv_bfe_u32 v5, v0, 2, 2\nv_and_b32 v6, 3, v0")
    A("s_mul_i32 s42, s16, 3\nv_add_u32 v7, s42, v5\nv_cmp_eq_u32 vcc, 3, v5\nv_mov_b32 v8, 12\ns_nop 0\nv_cndmask_b32 v7, v7, v8, vcc")
    A("v_mov_b32 v8, 0.5\nv_mov_b32 v9, 1.0\nv_cndmask_b32 v9, v9, v8, vcc")
    A("s_lshr_b32 s43, s16, 1\ns_lshl_b32 s42, s43, 6\nv_mov_b32 v8, s42\nv_mov_b32 v10, 0\nv_cndmask_b32 v10, v10, v8, vcc")
    A("v_mul_u32_u24 v11, 832, v4\nv_lshlrev_b32 v7, 6, v7\nv_lshlrev_b32 v6, 4, v6\nv_add3_u32 v11, v11, v7, v6")
    A(f"v_lshlrev_b32 v4, 9, v4\nv_lshlrev_b32 v5, 7, v5\nv_add3_u32 v12, v4, v5, v6\ns_lshl_b32 s42, s16, 12\ns_add_u32 s42, s42, {L_BIAS}")
    A("v_add3_u32 v12, v12, v10, s42\nv_xor_b32 v13, 64, v12")
    if cfg.p1:
        A("s_lshl_b32 s54, s2, 2\ns_add_u32 s54, s54, s16\ns_min_u32 s54, s54, 1013")
        A("s_mul_i32 s55, s54, 24819\ns_lshr_b32 s55, s55, 22")
        A("s_mul_i32 s56, s55, 169\ns_sub_u32 s56, s54, s56")
        A("s_mul_i32 s57, s56, 5042\ns_lshr_b32 s57, s57, 16")
        A("s_mul_i32 s58, s57, 13\ns_sub_u32 s58, s56, s58")
        A(f"s_mul_i32 s55, s55, {LAYER_B}")
        A("s_mul_i32 s54, s57, 26624\ns_add_u32 s54, s54, s55\ns_lshl_b32 s56, s58, 6\ns_add_u32 s54, s54, s56\ns_add_u32 s54, s54, 3328")
        A("s_mul_i32 s58, s58, 26624\ns_add_u32 s58, s58, s55\ns_lshl_b32 s57, s57, 10\ns_add_u32 s58, s58, s57")
        A(f"s_add_u32 s58, s58, {WOFF}")
        A("v_lshrrev_b32 v48, 4, v0\nv_and_b32 v49, 15, v0\nv_mul_u32_u24 v48, 6656, v48\nv_lshlrev_b32 v49, 2, v49\nv_add_u32 v48, v48, v49")
        A("v_add_u32 v49, 13312, v2\nv_lshlrev_b32 v50, 2, v0")
        A("s_mov_b32 s56, 0x05040100\ns_mov_b32 s57, 0x07060302")
    A("s_waitcnt lgkmcnt(0)")
    if cfg.p1:
        A("s_add_u32 s6, s6, s54\ns_addc_u32 s7, s7, 0\ns_add_u32 s58, s14, s58\ns_addc_u32 s59, s15, 0")
        for e in range(8): S.append(I(f"global_load_dword v{52+e}, v48, s[6:7] offset:{(e-4)*832}", "G", wr=[f"v{52+e}"]))
    A("s_add_u32 s4, s4, s45\ns_addc_u32 s5, s5, 0")
    A("s_lshl_b32 s46, s16, 10")
    for s in range(13):
        dest = (s//3)*GSTR + (s%3)*4096 if s < 12 else L_X12
        A(f"s_add_u32 m0, s46, {dest - s*64}")
        if s == 0: A("s_nop 0")
        else: A(["s_mov_b32 s48, s8", "s_mov_b32 s49, s9", "s_mov_b32 s50, 4992", "s_mov_b32 s51, 0x20000",
                 f"s_add_u32 s{SPF}, s14, {WOFF}\ns_addc_u32 s{SPF+1}, s15, 0",
                 f"s_mul_i32 s42, s16, {6*TILE_B}",
                 f"s_add_u32 s{SOWN}, s{SPF}, s42\ns_addc_u32 s{SOWN+1}, s{SPF+1}, 0",
                 f"s_sub_u32 s{SOWN12}, s{SOWN}, {L_X12-12288}\ns_subb_u32 s{SOWN12+1}, s{SOWN+1}, 0",
                 f"s_add_u32 s42, s43, 24\ns_mul_i32 s42, s42, {TILE_B}",
                 f"s_add_u32 s{STS}, s{SPF}, s42\ns_addc_u32 s{STS+1}, s{SPF+1}, 0",
                 f"s_add_u32 s{SSPEC}, s42, 12288",
                 f"s_mov_b32 s{SRD}, s14\ns_mov_b32 s{SRD+1}, s15\ns_mov_b32 s{SRD+3}, 0x20000"][s-1])
        S.append(I(f"global_load_lds_dwordx4 v3, s[4:5] offset:{s*64}{cfg.xflag}", "G", wr=["Lx0img"]))
    A(f"s_and_b32 s42, s16, 1\ns_cmp_eq_u32 s42, 0\ns_cselect_b32 s{SRD+2}, {WOFF + 6*LAYER_B}, 0")
    pf0 = [I(f"global_load_dword v{VPFD}, v{VPF}, s[{SPF}:{SPF+1}]{cfg.ldflag}", "G", wr=[f"v{VPFD}"]),
           R(f"s_add_u32 s{SPF}, s{SPF}, {LAYER_B}\ns_addc_u32 s{SPF+1}, s{SPF+1}, 0")]
    if not cfg.p1: S += pf0
    S.append(I("buffer_load_dwordx4 v[16:19], v11, s[48:51], 0 offen", "B", wr=regs('v',16,4)))
    S.append(I("buffer_load_dwordx4 v[20:23], v11, s[48:51], 0 offen offset:3328", "B", wr=regs('v',20,4)))
    if cfg.codepf:
        A("s_getpc_b64 s[52:53]\nv_lshlrev_b32 v14, 7, v0\ns_lshl_b32 s42, s16, 13\nv_add_u32 v14, s42, v14\nv_min_u32 v14, L_end-L_pc, v14")
        S[-1].text = S[-1].text.replace("s_getpc_b64 s[52:53]", "s_getpc_b64 s[52:53]\nL_pc:")
        S.append(I(f"global_load_dword v15, v14, s[52:53]", "G", wr=["v15"]))
    wl = [x for x in pre if x.tag.cls in ('wload', 'wupd')]
    rest = [x for x in pre if x.tag.cls not in ('wload', 'wupd')]
    if cfg.p1:
        S.append(Wait())
        for p in range(4):
            S.append(Vv(f"v_perm_b32 v{60+p}, v{53+2*p}, v{52+2*p}, s56", rd=[f"v{53+2*p}", f"v{52+2*p}"], wr=[f"v{60+p}"]))
            S.append(Vv(f"v_perm_b32 v{64+p}, v{53+2*p}, v{52+2*p}, s57", rd=[f"v{53+2*p}", f"v{52+2*p}"], wr=[f"v{64+p}"]))
        if cfg.stamp: A("s_memtime s[72:73]")
        S.append(I("global_store_dwordx4 v2, v[60:63], s[58:59] sc1", "T", rd=regs('v',60,4), wr=["Mw"]))
        S.append(I("global_store_dwordx4 v49, v[64:67], s[58:59] sc1", "T", rd=regs('v',64,4), wr=["Mw"]))
    elif cfg.nearly is None: S += wl
    else:
        k = [i for i, x in enumerate(wl) if x.vm][cfg.nearly]
        S += wl[:k]; wl = wl[k:]
    for r in range(4):
        A(f"s_add_u32 s42, s45, {r*13312}\ns_add_u32 s{SOUT(r)}, s10, s42\ns_addc_u32 s{SOUT(r)+1}, s11, 0")
    S.append(Wait())
    for rd in range(2):
        b = 16 + 4*rd
        for q in range(4):
            S.append(Vv(f"v_lshlrev_b32 v{24+q}, 16, v{b+q}", rd=[f"v{b+q}"], wr=[f"v{24+q}"]))
            S.append(Vv(f"v_and_b32 v{28+q}, s{SMASK}, v{b+q}", rd=[f"v{b+q}"], wr=[f"v{28+q}"]))
        for q in range(8):
            S.append(Vv(f"v_mul_f32 v{32+8*rd+q}, v9, v{24+q}", rd=[f"v{24+q}"], wr=[f"v{32+8*rd+q}"]))
        S.append(I(f"ds_write_b128 v12, v[{32+8*rd}:{35+8*rd}] offset:{2048*rd}", "X", rd=regs('v',32+8*rd,4), wr=["Lb"]))
        S.append(I(f"ds_write_b128 v13, v[{36+8*rd}:{39+8*rd}] offset:{2048*rd}", "X", rd=regs('v',36+8*rd,4), wr=["Lb"]))
    S.append(Wait())
    S.append(I("s_barrier", "BAR", rd=["Lx0img", "Lb"] + (["Mw"] if cfg.p1 else [])))
    if cfg.stamp: A("s_memtime s[64:65]\ns_waitcnt lgkmcnt(0)")
    if cfg.p1:
        A("s_cmp_lg_u32 s16, 0\ns_cbranch_scc1 L_noflag\ns_mov_b64 exec, 1\nv_mov_b32 v51, 1")
        if cfg.flag == 'byte':
            A("v_mov_b32 v52, s2\nglobal_store_byte v52, v51, s[12:13] sc1")
        else:
            A(f"s_and_b32 s42, s2, {cfg.nshard-1}\ns_mul_i32 s42, s42, {256//cfg.nshard}\nv_mov_b32 v52, s42\nglobal_atomic_add v52, v51, s[12:13] sc1")
        A("s_mov_b64 exec, -1\nL_noflag:")
    elif cfg.nearly is not None: S += wl
    S += rest
    def rdx(slot, r):
        p, b = xreg(slot, r)
        if slot == 12: txt = f"ds_read_b128 {rng(p,b,4)}, v{VRD12} offset:{r*1024}"
        else: txt = f"ds_read_b128 {rng(p,b,4)}, v{VRD[slot[0]]} offset:{(slot[1]*4+r)*1024}"
        ins = I(txt, "D", wr=regs(p,b,4)); ins.name = ({}, ('X', 0, slot, r)); return ins
    own = [((0, j), r) for j in range(3) for r in range(4)]
    oth = [(s, r) for gi in range(3) for r in range(4) for s in GROUPS_OWN[gi] if (s, r) not in own]
    S.append(I(f"ds_read_b128 {rng('v',TT,4)}, v{VS} offset:{L_X12-12288}", "D", wr=regs('v',TT,4)))
    for s, r in own: S.append(rdx(s, r))
    un = []
    for q in range(4):
        un.append(Vv(f"v_lshlrev_b32 v{X0S+2*q}, 16, v{TT+q}", rd=[f"v{TT+q}"], wr=[f"v{X0S+2*q}"]))
        un.append(Vv(f"v_and_b32 v{X0S+2*q+1}, s{SMASK}, v{TT+q}", rd=[f"v{TT+q}"], wr=[f"v{X0S+2*q+1}"]))
        un.append(Vv(f"v_lshlrev_b32 v{XS+2*q}, 16, v{TT+q}", rd=[f"v{TT+q}"], wr=[f"v{XS+2*q}"]))
        un.append(Vv(f"v_and_b32 v{XS+2*q+1}, s{SMASK}, v{TT+q}", rd=[f"v{TT+q}"], wr=[f"v{XS+2*q+1}"]))
    for (s, r) in own:
        j = s[1]
        for q in range(4):
            un.append(Vv(f"v_lshlrev_b32 v{X0F(j,r,2*q)}, 16, v{XV(j,r)+q}", rd=[f"v{XV(j,r)+q}"], wr=[f"v{X0F(j,r,2*q)}"]))
            un.append(Vv(f"v_and_b32 v{X0F(j,r,2*q+1)}, s{SMASK}, v{XV(j,r)+q}", rd=[f"v{XV(j,r)+q}"], wr=[f"v{X0F(j,r,2*q+1)}"]))
    while oth or un:
        if oth: S.append(rdx(*oth.pop(0)))
        S.append(Wait())
        for _ in range(3):
            if un: S.append(un.pop(0))
    if cfg.p1:
        if cfg.flag == 'byte':
            A("s_mov_b32 s42, 0x01010101\nv_lshlrev_b32 v1, 2, v0")
        else:
            A(f"s_mov_b32 s42, {256//cfg.nshard}\nv_and_b32 v1, {cfg.nshard-1}, v0\nv_mul_u32_u24 v1, {256//cfg.nshard}, v1")
        A("s_mov_b32 s43, 0x4000\ns_mov_b32 s76, 0")
        A("L_poll:\nglobal_load_dword v2, v1, s[12:13] sc1\ns_add_u32 s76, s76, 1\ns_sub_u32 s43, s43, 1\ns_cbranch_scc1 L_polled\ns_waitcnt vmcnt(0)\nv_cmp_ne_u32 vcc, s42, v2\ns_nop 4\ns_cbranch_vccnz L_poll\nL_polled:")
        if cfg.stamp: A("s_memtime s[74:75]\ns_waitcnt lgkmcnt(0)")
        S += pf0 + wl
    A(f"s_mov_b32 s{SCNT}, {cfg.nlayers-2}")
    S.append(Wait())
    npro = len(S)
    lastm = max(i for i, x in enumerate(body) if x.kind == "M")
    full = S + body
    insert_waits(full)
    init = {f"s{SOWN}": ('s',0,0), f"s{SOWN12}": ('s',0,0), f"s{STS}": ('s',0,'S'), f"s{SSPEC}": ('s',0), f"v{VBIAS}": ('vb',0)}
    init.update({f"v{XS+i}": ('XS',0) for i in range(8)})
    check_tags(full, init)
    SPLIT = cfg.split
    def seg_index(x): return x.layer + (1 if x.pos >= SPLIT else 0)
    segs = {}
    for x in body: segs.setdefault(min(seg_index(x), cfg.nlayers), []).append(x)
    loop = [segs[k] for k in range(1, cfg.nlayers)]
    for sg in loop[1:]:
        assert len(sg) == len(loop[0]) and all(a.text == b.text and a.kind == b.kind for a, b in zip(sg, loop[0]))
    for tup in zip(*loop):
        if isinstance(tup[0], Wait):
            vm = [w.vmn for w in tup if w.vmn is not None]; lg = [w.lgn for w in tup if w.lgn is not None]
            for w in tup:
                w.vmn = min(vm) if vm else None; w.lgn = min(lg) if lg else None
    verify_waits(full)
    errs = check_hazards(full)
    fin = segs[cfg.nlayers]
    if errs:
        i = max(k for k, x in enumerate(fin) if x.kind == "M")
        fin.insert(i+1, R("s_nop 7"))
        full = S + segs[0] + sum(loop, []) + fin
        errs = check_hazards(full)
    assert not errs, errs
    out = [f".globl {KN}\n.p2align 8\n.type {KN},@function\n{KN}:"]
    out += render(S) + render(segs[0])
    if cfg.loopalign: out.append(".p2align 6")
    out.append("L_loop:")
    out += render(loop[0])
    out.append(f"s_sub_u32 s{SCNT}, s{SCNT}, 1\ns_cbranch_scc0 L_loop")
    out += render(fin)
    if cfg.stamp:
        out.append("s_memtime s[66:67]\ns_waitcnt vmcnt(0)\ns_memtime s[68:69]\ns_memrealtime s[70:71]\ns_waitcnt lgkmcnt(0)")
        out.append("s_sub_u32 s64, s64, s60\ns_sub_u32 s66, s66, s60\ns_sub_u32 s68, s68, s60")
        out.append("v_mov_b32 v4, s64\nv_mov_b32 v5, s66\nv_mov_b32 v6, s68\nv_mov_b32 v7, s62\nv_mov_b32 v8, s70")
        if cfg.p1: out.append("s_sub_u32 s72, s72, s60\ns_sub_u32 s74, s74, s60\nv_mov_b32 v10, s72\nv_mov_b32 v11, s74\nv_mov_b32 v12, s76")
        out.append(f"s_lshl_b32 s42, s2, 2\ns_add_u32 s42, s42, s16\ns_lshl_b32 s42, s42, 5\ns_add_u32 s42, s42, {4<<20}\nv_mov_b32 v9, s42")
        out.append("s_mov_b64 exec, 1\nglobal_store_dwordx4 v9, v[4:7], s[14:15]\nglobal_store_dword v9, v8, s[14:15] offset:16")
        if cfg.p1: out.append("global_store_dwordx3 v9, v[10:12], s[14:15] offset:20")
    out.append("L_end:\ns_endpgm")
    return "\n".join(out), info

class C0(Cfg):
    stamp = False
    codepf = True
    xflag = ""
    split = 54
    loopalign = True
    p1 = False
    flag = 'byte'
    nshard = 2
    nearly = None

def gen(cfg):
    mk, info = main_kernel(cfg)
    txt = HEAD
    if cfg.p1:
        txt += f"; @launch grid=(256,1,1) block=(256,1,1) lds={LDS_BYTES}\n"
        txt += '.amdgcn_target "amdgcn-amd-amdhsa--gfx950"\n.text\n' + mk + "\n"
        txt += '.section .rodata,"a"\n.p2align 6\n' + kd(KN, 512, 256)
        return txt, info
    txt += f"; @launch kernel=prep_kernel grid=(254,1,1) block=(256,1,1) lds=0\n"
    txt += f"; @launch kernel={KN} grid=(256,1,1) block=(256,1,1) lds={LDS_BYTES}\n"
    txt += '.amdgcn_target "amdgcn-amd-amdhsa--gfx950"\n.text\n'
    txt += mk + "\n" + prepass() + "\n"
    txt += '.section .rodata,"a"\n.p2align 6\n' + kd(KN, 512, 256) + ".p2align 6\n" + kd("prep_kernel", 24, 24, 32)
    return txt, info

if __name__ == "__main__":
    cfg = C0()
    for a in sys.argv[2:]:
        k, v = a.split("=", 1); setattr(cfg, k, eval(v))
    txt, info = gen(cfg)
    open(sys.argv[1], "w").write(txt)
    print(info, len(txt.splitlines()), "lines")
```

```python
import sys
from fast import *

KN = "standalone__dcn_v2_cross__recsys_kernel"
WOFF = 65536
LDS_BYTES = L_BIAS + 16384

HEAD = """; DCN-v2 cross network, 6 layers, B=16384, D=416, bf16 (generated by my own scheduling script)
"""
def kd(name, nv, acc, ns=102):
    return f""".amdhsa_kernel {name}
  .amdhsa_next_free_vgpr {nv}
  .amdhsa_next_free_sgpr {ns}
  .amdhsa_accum_offset {acc}
  .amdhsa_group_segment_fixed_size 0
  .amdhsa_kernarg_size 48
  .amdhsa_user_sgpr_count 2
  .amdhsa_user_sgpr_kernarg_segment_ptr 1
  .amdhsa_system_sgpr_workgroup_id_x 1
  .amdhsa_float_denorm_mode_32 3
.end_amdhsa_kernel
"""
for u in range(1024):
    assert (u*24819) >> 22 == u // 169
for u in range(169):
    assert (u*5042) >> 16 == u // 13
for u in range(64):
    assert (u*21846) >> 16 == u // 3

def prepass():
    L = []; A = L.append
    A(".globl prep_kernel\n.p2align 8\n.type prep_kernel,@function\nprep_kernel:")
    A("s_load_dwordx2 s[4:5], s[0:1], 8\ns_load_dwordx2 s[6:7], s[0:1], 40")
    A("v_lshrrev_b32 v1, 6, v0\nv_and_b32 v0, 63, v0\ns_nop 0\nv_readfirstlane_b32 s16, v1")
    A("s_cmp_ge_u32 s2, 254\ns_cbranch_scc1 Lp_end")
    A("s_lshl_b32 s17, s2, 2\ns_add_u32 s17, s17, s16")
    A("s_cmp_ge_u32 s17, 1014\ns_cbranch_scc1 Lp_end")
    A("s_mul_i32 s18, s17, 24819\ns_lshr_b32 s18, s18, 22")
    A("s_mul_i32 s19, s18, 169\ns_sub_u32 s19, s17, s19")
    A("s_mul_i32 s20, s19, 5042\ns_lshr_b32 s20, s20, 16")
    A("s_mul_i32 s21, s20, 13\ns_sub_u32 s21, s19, s21")
    A(f"s_mul_i32 s22, s18, {LAYER_B}")
    A("s_mul_i32 s23, s20, 26624\ns_add_u32 s23, s23, s22\ns_lshl_b32 s24, s21, 6\ns_add_u32 s23, s23, s24\ns_add_u32 s23, s23, 3328")
    A("s_mul_i32 s25, s21, 26624\ns_add_u32 s25, s25, s22\ns_lshl_b32 s24, s20, 10\ns_add_u32 s25, s25, s24")
    A(f"s_add_u32 s25, s25, {WOFF}")
    A("v_lshrrev_b32 v1, 4, v0\nv_and_b32 v2, 15, v0\nv_mul_u32_u24 v1, 6656, v1\nv_lshlrev_b32 v2, 2, v2\nv_add_u32 v1, v1, v2")
    A("v_lshlrev_b32 v3, 4, v0\nv_add_u32 v20, 13312, v3")
    A("s_mov_b32 s26, 0x05040100\ns_mov_b32 s27, 0x07060302")
    A("s_waitcnt lgkmcnt(0)")
    A("s_add_u32 s4, s4, s23\ns_addc_u32 s5, s5, 0\ns_add_u32 s6, s6, s25\ns_addc_u32 s7, s7, 0")
    for e in range(8): A(f"global_load_dword v{4+e}, v1, s[4:5] offset:{(e-4)*832}")
    for p in range(4):
        A(f"s_waitcnt vmcnt({6-2*p})")
        A(f"v_perm_b32 v{12+p}, v{5+2*p}, v{4+2*p}, s26")
        A(f"v_perm_b32 v{16+p}, v{5+2*p}, v{4+2*p}, s27")
    A("global_store_dwordx4 v3, v[12:15], s[6:7]\nglobal_store_dwordx4 v20, v[16:19], s[6:7]")
    A("Lp_end:\ns_endpgm")
    return "\n".join(L)

def R(txt): return I(txt, "S")
def Vv(txt, rd=(), wr=()): return I(txt, "V", rd=rd, wr=wr)

def setup_common(cfg, S):
    A = lambda t: S.append(R(t))
    A("s_load_dwordx8 s[4:11], s[0:1], 0\ns_load_dwordx4 s[12:15], s[0:1], 32")
    A("v_lshrrev_b32 v1, 6, v0\nv_and_b32 v0, 63, v0\ns_nop 0\nv_readfirstlane_b32 s16, v1")
    A("v_lshlrev_b32 v2, 4, v0")
    A("v_and_b32 v3, 15, v0\nv_lshrrev_b32 v1, 4, v0\nv_mul_u32_u24 v3, 832, v3\nv_lshlrev_b32 v1, 4, v1\nv_add_u32 v3, v3, v1")
    for d in range(4):
        A(f"s_add_u32 s42, s16, {d}\ns_and_b32 s42, s42, 3\ns_lshl_b32 s43, s42, 14\ns_mul_i32 s44, s42, 3072")
        A(f"v_add_u32 v{VRD[d]}, s43, v2\nv_add_u32 v{VW[d]}, s44, v2")
    A(f"v_add_u32 v{VRD12}, {L_X12}, v2")
    A(f"s_lshl_b32 s42, s16, 10\ns_add_u32 s42, s42, 12288\nv_add_u32 v{VS}, s42, v2")
    A(f"s_lshl_b32 s42, s16, 12\ns_add_u32 s42, s42, {L_BIAS}\nv_add_u32 v{VBIAS}, s42, v1")
    A(f"s_mul_i32 s42, s16, 192\nv_add_u32 v{VOUT}, s42, v3")
    A(f"s_mul_i32 s42, s16, 13312\nv_add_u32 v3, s42, v3\nv_add_u32 v{VOUT12}, 768, v3")
    A(f"s_lshr_b32 s42, s2, 3\ns_and_b32 s42, s42, 31\ns_lshl_b32 s42, s42, 2\ns_add_u32 s42, s42, s16\ns_mul_i32 s42, s42, 22")
    A(f"v_mul_u32_u24 v{VPF}, 21846, v0\nv_lshrrev_b32 v{VPF}, 16, v{VPF}\nv_add_u32 v{VPF}, s42, v{VPF}\nv_min_u32 v{VPF}, 2703, v{VPF}\nv_lshlrev_b32 v{VPF}, 7, v{VPF}")
    A(f"s_mov_b32 s{SMASK}, 0xffff0000")
    A("s_mul_i32 s45, s2, 53248")

def main_kernel(cfg):
    mf, G, items, info = build_schedule(cfg)
    pre, body = unroll(mf, G, cfg, 0)
    S = []
    A = lambda t: S.append(R(t))
    if cfg.stamp: A("s_memtime s[60:61]\ns_memrealtime s[62:63]")
    if cfg.diag: A("s_memrealtime s[80:81]")
    A("s_cmp_ge_u32 s2, 256\ns_cbranch_scc1 L_end")
    setup_common(cfg, S)
    A("v_lshrrev_b32 v4, 4, v0\nv_bfe_u32 v5, v0, 2, 2\nv_and_b32 v6, 3, v0")
    A("s_mul_i32 s42, s16, 3\nv_add_u32 v7, s42, v5\nv_cmp_eq_u32 vcc, 3, v5\nv_mov_b32 v8, 12\ns_nop 0\nv_cndmask_b32 v7, v7, v8, vcc")
    A("v_mov_b32 v8, 0.5\nv_mov_b32 v9, 1.0\nv_cndmask_b32 v9, v9, v8, vcc")
    A("s_lshr_b32 s43, s16, 1\ns_lshl_b32 s42, s43, 6\nv_mov_b32 v8, s42\nv_mov_b32 v10, 0\nv_cndmask_b32 v10, v10, v8, vcc")
    A("v_mul_u32_u24 v11, 832, v4\nv_lshlrev_b32 v7, 6, v7\nv_lshlrev_b32 v6, 4, v6\nv_add3_u32 v11, v11, v7, v6")
    A(f"v_lshlrev_b32 v4, 9, v4\nv_lshlrev_b32 v5, 7, v5\nv_add3_u32 v12, v4, v5, v6\ns_lshl_b32 s42, s16, 12\ns_add_u32 s42, s42, {L_BIAS}")
    A("v_add3_u32 v12, v12, v10, s42\nv_xor_b32 v13, 64, v12")
    if cfg.p1:
        A("s_lshl_b32 s54, s2, 2\ns_add_u32 s54, s54, s16\ns_min_u32 s54, s54, 1013")
        A("s_mul_i32 s55, s54, 24819\ns_lshr_b32 s55, s55, 22")
        A("s_mul_i32 s56, s55, 169\ns_sub_u32 s56, s54, s56")
        A("s_mul_i32 s57, s56, 5042\ns_lshr_b32 s57, s57, 16")
        A("s_mul_i32 s58, s57, 13\ns_sub_u32 s58, s56, s58")
        A(f"s_mul_i32 s55, s55, {LAYER_B}")
        A("s_mul_i32 s54, s57, 26624\ns_add_u32 s54, s54, s55\ns_lshl_b32 s56, s58, 6\ns_add_u32 s54, s54, s56\ns_add_u32 s54, s54, 3328")
        A("s_mul_i32 s58, s58, 26624\ns_add_u32 s58, s58, s55\ns_lshl_b32 s57, s57, 10\ns_add_u32 s58, s58, s57")
        A(f"s_add_u32 s58, s58, {WOFF}")
        A("v_lshrrev_b32 v48, 4, v0\nv_and_b32 v49, 15, v0\nv_mul_u32_u24 v48, 6656, v48\nv_lshlrev_b32 v49, 2, v49\nv_add_u32 v48, v48, v49")
        A("v_add_u32 v49, 13312, v2\nv_lshlrev_b32 v50, 2, v0")
        A("s_mov_b32 s56, 0x05040100\ns_mov_b32 s57, 0x07060302")
    A("s_waitcnt lgkmcnt(0)")
    if cfg.p1:
        A("s_add_u32 s6, s6, s54\ns_addc_u32 s7, s7, 0\ns_add_u32 s58, s14, s58\ns_addc_u32 s59, s15, 0")
        for e in range(8): S.append(I(f"global_load_dword v{52+e}, v48, s[6:7] offset:{(e-4)*832}", "G", wr=[f"v{52+e}"]))
    A("s_add_u32 s4, s4, s45\ns_addc_u32 s5, s5, 0")
    A("s_lshl_b32 s46, s16, 10")
    for s in range(13):
        dest = (s//3)*GSTR + (s%3)*4096 if s < 12 else L_X12
        A(f"s_add_u32 m0, s46, {dest - s*64}")
        if s == 0: A("s_nop 0")
        else: A(["s_mov_b32 s48, s8", "s_mov_b32 s49, s9", "s_mov_b32 s50, 4992", "s_mov_b32 s51, 0x20000",
                 f"s_add_u32 s{SPF}, s14, {WOFF}\ns_addc_u32 s{SPF+1}, s15, 0",
                 f"s_mul_i32 s42, s16, {6*TILE_B}",
                 f"s_add_u32 s{SOWN}, s{SPF}, s42\ns_addc_u32 s{SOWN+1}, s{SPF+1}, 0",
                 f"s_sub_u32 s{SOWN12}, s{SOWN}, {L_X12-12288}\ns_subb_u32 s{SOWN12+1}, s{SOWN+1}, 0",
                 f"s_add_u32 s42, s43, 24\ns_mul_i32 s42, s42, {TILE_B}",
                 f"s_add_u32 s{STS}, s{SPF}, s42\ns_addc_u32 s{STS+1}, s{SPF+1}, 0",
                 f"s_add_u32 s{SSPEC}, s42, 12288",
                 f"s_mov_b32 s{SRD}, s14\ns_mov_b32 s{SRD+1}, s15\ns_mov_b32 s{SRD+3}, 0x20000"][s-1])
        S.append(I(f"global_load_lds_dwordx4 v3, s[4:5] offset:{s*64}{cfg.xflag}", "G", wr=["Lx0img"]))
    A(f"s_and_b32 s42, s16, 1\ns_cmp_eq_u32 s42, 0\ns_cselect_b32 s{SRD+2}, {WOFF + 6*LAYER_B}, 0")
    pf0 = [I(f"global_load_dword v{VPFD}, v{VPF}, s[{SPF}:{SPF+1}]{cfg.ldflag}", "G", wr=[f"v{VPFD}"]),
           R(f"s_add_u32 s{SPF}, s{SPF}, {LAYER_B}\ns_addc_u32 s{SPF+1}, s{SPF+1}, 0")]
    if not cfg.p1: S += pf0
    S.append(I("buffer_load_dwordx4 v[16:19], v11, s[48:51], 0 offen", "B", wr=regs('v',16,4)))
    S.append(I("buffer_load_dwordx4 v[20:23], v11, s[48:51], 0 offen offset:3328", "B", wr=regs('v',20,4)))
    if cfg.codepf:
        A("s_getpc_b64 s[52:53]\nv_lshlrev_b32 v14, 7, v0\ns_lshl_b32 s42, s16, 13\nv_add_u32 v14, s42, v14\nv_min_u32 v14, L_end-L_pc, v14")
        S[-1].text = S[-1].text.replace("s_getpc_b64 s[52:53]", "s_getpc_b64 s[52:53]\nL_pc:")
        S.append(I(f"global_load_dword v15, v14, s[52:53]", "G", wr=["v15"]))
    wl = [x for x in pre if x.tag.cls in ('wload', 'wupd')]
    rest = [x for x in pre if x.tag.cls not in ('wload', 'wupd')]
    if cfg.p1:
        S.append(Wait())
        for p in range(4):
            S.append(Vv(f"v_perm_b32 v{60+p}, v{53+2*p}, v{52+2*p}, s56", rd=[f"v{53+2*p}", f"v{52+2*p}"], wr=[f"v{60+p}"]))
            S.append(Vv(f"v_perm_b32 v{64+p}, v{53+2*p}, v{52+2*p}, s57", rd=[f"v{53+2*p}", f"v{52+2*p}"], wr=[f"v{64+p}"]))
        if cfg.stamp: A("s_memtime s[72:73]")
        S.append(I("global_store_dwordx4 v2, v[60:63], s[58:59] sc1", "T", rd=regs('v',60,4), wr=["Mw"]))
        S.append(I("global_store_dwordx4 v49, v[64:67], s[58:59] sc1", "T", rd=regs('v',64,4), wr=["Mw"]))
    elif cfg.nearly is None: S += wl
    else:
        k = [i for i, x in enumerate(wl) if x.vm][cfg.nearly]
        S += wl[:k]; wl = wl[k:]
    for r in range(4):
        A(f"s_add_u32 s42, s45, {r*13312}\ns_add_u32 s{SOUT(r)}, s10, s42\ns_addc_u32 s{SOUT(r)+1}, s11, 0")
    S.append(Wait())
    for rd in range(2):
        b = 16 + 4*rd
        for q in range(4):
            S.append(Vv(f"v_lshlrev_b32 v{24+q}, 16, v{b+q}", rd=[f"v{b+q}"], wr=[f"v{24+q}"]))
            S.append(Vv(f"v_and_b32 v{28+q}, s{SMASK}, v{b+q}", rd=[f"v{b+q}"], wr=[f"v{28+q}"]))
        for q in range(8):
            S.append(Vv(f"v_mul_f32 v{32+8*rd+q}, v9, v{24+q}", rd=[f"v{24+q}"], wr=[f"v{32+8*rd+q}"]))
        S.append(I(f"ds_write_b128 v12, v[{32+8*rd}:{35+8*rd}] offset:{2048*rd}", "X", rd=regs('v',32+8*rd,4), wr=["Lb"]))
        S.append(I(f"ds_write_b128 v13, v[{36+8*rd}:{39+8*rd}] offset:{2048*rd}", "X", rd=regs('v',36+8*rd,4), wr=["Lb"]))
    S.append(Wait())
    S.append(I("s_barrier", "BAR", rd=["Lx0img", "Lb"] + (["Mw"] if cfg.p1 else [])))
    if cfg.stamp: A("s_memtime s[64:65]\ns_waitcnt lgkmcnt(0)")
    if cfg.diag: A("s_memrealtime s[82:83]\ns_waitcnt lgkmcnt(0)")
    if cfg.p1:
        A("s_cmp_lg_u32 s16, 0\ns_cbranch_scc1 L_noflag\ns_mov_b64 exec, 1\nv_mov_b32 v51, 1")
        if cfg.flag == 'byte':
            A("v_mov_b32 v52, s2\nglobal_store_byte v52, v51, s[12:13] sc1")
        else:
            A(f"s_and_b32 s42, s2, {cfg.nshard-1}\ns_mul_i32 s42, s42, {256//cfg.nshard}\nv_mov_b32 v52, s42\nglobal_atomic_add v52, v51, s[12:13] sc1")
        A("s_mov_b64 exec, -1\nL_noflag:")
    elif cfg.nearly is not None: S += wl
    S += rest
    def rdx(slot, r):
        p, b = xreg(slot, r)
        if slot == 12: txt = f"ds_read_b128 {rng(p,b,4)}, v{VRD12} offset:{r*1024}"
        else: txt = f"ds_read_b128 {rng(p,b,4)}, v{VRD[slot[0]]} offset:{(slot[1]*4+r)*1024}"
        ins = I(txt, "D", wr=regs(p,b,4)); ins.name = ({}, ('X', 0, slot, r)); return ins
    own = [((0, j), r) for j in range(3) for r in range(4)]
    oth = [(s, r) for gi in range(3) for r in range(4) for s in GROUPS_OWN[gi] if (s, r) not in own]
    S.append(I(f"ds_read_b128 {rng('v',TT,4)}, v{VS} offset:{L_X12-12288}", "D", wr=regs('v',TT,4)))
    for s, r in own: S.append(rdx(s, r))
    un = []
    for q in range(4):
        un.append(Vv(f"v_lshlrev_b32 v{X0S+2*q}, 16, v{TT+q}", rd=[f"v{TT+q}"], wr=[f"v{X0S+2*q}"]))
        un.append(Vv(f"v_and_b32 v{X0S+2*q+1}, s{SMASK}, v{TT+q}", rd=[f"v{TT+q}"], wr=[f"v{X0S+2*q+1}"]))
        un.append(Vv(f"v_lshlrev_b32 v{XS+2*q}, 16, v{TT+q}", rd=[f"v{TT+q}"], wr=[f"v{XS+2*q}"]))
        un.append(Vv(f"v_and_b32 v{XS+2*q+1}, s{SMASK}, v{TT+q}", rd=[f"v{TT+q}"], wr=[f"v{XS+2*q+1}"]))
    for (s, r) in own:
        j = s[1]
        for q in range(4):
            un.append(Vv(f"v_lshlrev_b32 v{X0F(j,r,2*q)}, 16, v{XV(j,r)+q}", rd=[f"v{XV(j,r)+q}"], wr=[f"v{X0F(j,r,2*q)}"]))
            un.append(Vv(f"v_and_b32 v{X0F(j,r,2*q+1)}, s{SMASK}, v{XV(j,r)+q}", rd=[f"v{XV(j,r)+q}"], wr=[f"v{X0F(j,r,2*q+1)}"]))
    while oth or un:
        if oth: S.append(rdx(*oth.pop(0)))
        S.append(Wait())
        for _ in range(3):
            if un: S.append(un.pop(0))
    if cfg.p1:
        if cfg.flag == 'byte':
            A("s_mov_b32 s42, 0x01010101\nv_lshlrev_b32 v1, 2, v0")
        else:
            A(f"s_mov_b32 s42, {256//cfg.nshard}\nv_and_b32 v1, {cfg.nshard-1}, v0\nv_mul_u32_u24 v1, {256//cfg.nshard}, v1")
        A("s_mov_b32 s43, 0x4000\ns_mov_b32 s76, 0")
        A("L_poll:\nglobal_load_dword v2, v1, s[12:13] sc1\ns_add_u32 s76, s76, 1\ns_sub_u32 s43, s43, 1\ns_cbranch_scc1 L_polled\ns_waitcnt vmcnt(0)\nv_cmp_ne_u32 vcc, s42, v2\ns_nop 4\ns_cbranch_vccnz L_poll\nL_polled:")
        if cfg.stamp: A("s_memtime s[74:75]\ns_waitcnt lgkmcnt(0)")
        S += pf0 + wl
    A(f"s_mov_b32 s{SCNT}, {cfg.nlayers-2}")
    S.append(Wait())
    npro = len(S)
    lastm = max(i for i, x in enumerate(body) if x.kind == "M")
    full = S + body
    insert_waits(full)
    init = {f"s{SOWN}": ('s',0,0), f"s{SOWN12}": ('s',0,0), f"s{STS}": ('s',0,'S'), f"s{SSPEC}": ('s',0), f"v{VBIAS}": ('vb',0)}
    init.update({f"v{XS+i}": ('XS',0) for i in range(8)})
    check_tags(full, init)
    SPLIT = cfg.split
    def seg_index(x): return x.layer + (1 if x.pos >= SPLIT else 0)
    segs = {}
    for x in body: segs.setdefault(min(seg_index(x), cfg.nlayers), []).append(x)
    loop = [segs[k] for k in range(1, cfg.nlayers)]
    for sg in loop[1:]:
        assert len(sg) == len(loop[0]) and all(a.text == b.text and a.kind == b.kind for a, b in zip(sg, loop[0]))
    for tup in zip(*loop):
        if isinstance(tup[0], Wait):
            vm = [w.vmn for w in tup if w.vmn is not None]; lg = [w.lgn for w in tup if w.lgn is not None]
            for w in tup:
                w.vmn = min(vm) if vm else None; w.lgn = min(lg) if lg else None
    verify_waits(full)
    errs = check_hazards(full)
    fin = segs[cfg.nlayers]
    if errs:
        i = max(k for k, x in enumerate(fin) if x.kind == "M")
        fin.insert(i+1, R("s_nop 7"))
        full = S + segs[0] + sum(loop, []) + fin
        errs = check_hazards(full)
    assert not errs, errs
    out = [f".globl {KN}\n.p2align 8\n.type {KN},@function\n{KN}:"]
    out += render(S) + render(segs[0])
    if cfg.loopalign: out.append(".p2align 6")
    out.append("L_loop:")
    out += render(loop[0])
    out.append(f"s_sub_u32 s{SCNT}, s{SCNT}, 1\ns_cbranch_scc0 L_loop")
    out += render(fin)
    if cfg.stamp:
        out.append("s_memtime s[66:67]\ns_waitcnt vmcnt(0)\ns_memtime s[68:69]\ns_memrealtime s[70:71]\ns_waitcnt lgkmcnt(0)")
        out.append("s_sub_u32 s64, s64, s60\ns_sub_u32 s66, s66, s60\ns_sub_u32 s68, s68, s60")
        out.append("v_mov_b32 v4, s64\nv_mov_b32 v5, s66\nv_mov_b32 v6, s68\nv_mov_b32 v7, s62\nv_mov_b32 v8, s70")
        if cfg.p1: out.append("s_sub_u32 s72, s72, s60\ns_sub_u32 s74, s74, s60\nv_mov_b32 v10, s72\nv_mov_b32 v11, s74\nv_mov_b32 v12, s76")
        out.append(f"s_lshl_b32 s42, s2, 2\ns_add_u32 s42, s42, s16\ns_lshl_b32 s42, s42, 5\ns_add_u32 s42, s42, {4<<20}\nv_mov_b32 v9, s42")
        out.append("s_mov_b64 exec, 1\nglobal_store_dwordx4 v9, v[4:7], s[14:15]\nglobal_store_dword v9, v8, s[14:15] offset:16")
        if cfg.p1: out.append("global_store_dwordx3 v9, v[10:12], s[14:15] offset:20")
    if cfg.diag:
        out.append("s_waitcnt vmcnt(0)\ns_memrealtime s[84:85]\ns_waitcnt lgkmcnt(0)")
        a, b, K = cfg.diag
        out.append(f"s_sub_u32 s86, s{b}, s{a}\ns_min_u32 s86, s86, 10000\ns_mul_i32 s86, s86, {K}")
        out.append("L_spin:\ns_sleep 2\ns_memrealtime s[88:89]\ns_waitcnt lgkmcnt(0)\ns_sub_u32 s87, s88, s84\ns_cmp_lt_u32 s87, s86\ns_cbranch_scc1 L_spin")
    out.append("L_end:\ns_endpgm")
    return "\n".join(out), info

class C0(Cfg):
    stamp = False
    codepf = True
    xflag = ""
    split = 54
    loopalign = True
    p1 = False
    diag = None
    flag = 'byte'
    nshard = 2
    nearly = None

def gen(cfg):
    mk, info = main_kernel(cfg)
    txt = HEAD
    if cfg.p1:
        txt += f"; @launch grid=(256,1,1) block=(256,1,1) lds={LDS_BYTES}\n"
        txt += '.amdgcn_target "amdgcn-amd-amdhsa--gfx950"\n.text\n' + mk + "\n"
        txt += '.section .rodata,"a"\n.p2align 6\n' + kd(KN, 512, 256)
        return txt, info
    txt += f"; @launch kernel=prep_kernel grid=(254,1,1) block=(256,1,1) lds=0\n"
    txt += f"; @launch kernel={KN} grid=(256,1,1) block=(256,1,1) lds={LDS_BYTES}\n"
    txt += '.amdgcn_target "amdgcn-amd-amdhsa--gfx950"\n.text\n'
    txt += mk + "\n" + prepass() + "\n"
    txt += '.section .rodata,"a"\n.p2align 6\n' + kd(KN, 512, 256) + ".p2align 6\n" + kd("prep_kernel", 24, 24, 32)
    return txt, info

if __name__ == "__main__":
    cfg = C0()
    for a in sys.argv[2:]:
        k, v = a.split("=", 1); setattr(cfg, k, eval(v))
    txt, info = gen(cfg)
    open(sys.argv[1], "w").write(txt)
    print(info, len(txt.splitlines()), "lines")
```

```python
import sys
from fast import *

KN = "standalone__dcn_v2_cross__recsys_kernel"
WOFF = 65536
BSTR = 3072
L_RING = L_BIAS + 4*BSTR
BLK = 6664
STG = 4*BLK
NS = 3
LDS_BYTES = L_RING + NS*STG
NUNIT = 845

for u in range(1024): assert (u*24819) >> 22 == u // 169
for u in range(169): assert (u*5042) >> 16 == u // 13
for u in range(64): assert (u*21846) >> 16 == u // 3

VL16, VL16B, VLW, VTR, VTR12, VUS, VPOLL, VPOLLD = 2, 3, 251, 252, 253, 254, 255, 1
def WB(b, t): return b*32 + t*4
def XB(b, r): return 64 + b*20 + r*4
def ACC0(t, r):
    if t >= 6: return XS + 4*(t-6)
    j, h = t // 2, t % 2
    if h == 0: return XV(j, r)
    return [ACC(0), X12(0), HOLD(0)][j] + 4*r
CQ = 68
CRAW = 100
S_XM0, S_RM0 = 46, 47
SRD_US, SRD_UD, S_US0, S_US1, S_UD0, S_UD1 = 48, 52, 56, 57, 58, 59
S_SEL0, S_SEL1, SRD_B, S_PC = 72, 73, 76, 80
S_RET, S_TRY = 74, 75

def kd(name, nv, acc, ns=102):
    return f""".amdhsa_kernel {name}
  .amdhsa_next_free_vgpr {nv}
  .amdhsa_next_free_sgpr {ns}
  .amdhsa_accum_offset {acc}
  .amdhsa_group_segment_fixed_size 0
  .amdhsa_kernarg_size 48
  .amdhsa_user_sgpr_count 2
  .amdhsa_user_sgpr_kernarg_segment_ptr 1
  .amdhsa_system_sgpr_workgroup_id_x 1
  .amdhsa_float_denorm_mode_32 3
.end_amdhsa_kernel
"""
def R(txt): return I(txt, "S")
def Vv(txt, rd=(), wr=()): return I(txt, "V", rd=rd, wr=wr)

def unit_addr(ureg):
    return (f"s_mul_i32 s42, s{ureg}, 24819\ns_lshr_b32 s42, s42, 22\n"
            f"s_mul_i32 s43, s42, 169\ns_sub_u32 s43, s{ureg}, s43\n"
            f"s_mul_i32 s44, s43, 5042\ns_lshr_b32 s44, s44, 16\n"
            f"s_mul_i32 s45, s44, 13\ns_sub_u32 s45, s43, s45\n"
            f"s_add_u32 s42, s42, 1\ns_mul_i32 s42, s42, {LAYER_B}\n"
            f"s_mul_i32 s{S_US0}, s44, 26624\ns_add_u32 s{S_US0}, s{S_US0}, s42\ns_lshl_b32 s43, s45, 6\ns_add_u32 s{S_US0}, s{S_US0}, s43\n"
            f"s_add_u32 s{S_US1}, s{S_US0}, 3328\n"
            f"s_mul_i32 s{S_UD0}, s45, 26624\ns_add_u32 s{S_UD0}, s{S_UD0}, s42\ns_lshl_b32 s43, s44, 10\ns_add_u32 s{S_UD0}, s{S_UD0}, s43\n"
            f"s_add_u32 s{S_UD0}, s{S_UD0}, {WOFF}\ns_add_u32 s{S_UD1}, s{S_UD0}, {TILE_B}")
def unit_load(e, base):
    return I(f"buffer_load_dword v{base+e}, v{VUS}, s[{SRD_US}:{SRD_US+3}], s{S_US0 if e < 4 else S_US1} offen offset:{(e%4)*832}", "B", wr=[f"v{base+e}"])
def unit_perm(p, h, base):
    return Vv(f"v_perm_b32 v{base+8+4*h+p}, v{base+2*p+1}, v{base+2*p}, s{S_SEL1 if h else S_SEL0}", rd=[f"v{base+2*p+1}", f"v{base+2*p}"], wr=[f"v{base+8+4*h+p}"])
def unit_store(h, base):
    return I(f"buffer_store_dwordx4 {rng('v',base+8+4*h,4)}, v{VL16}, s[{SRD_UD}:{SRD_UD+3}], s{S_UD1 if h else S_UD0} offen sc1", "T", rd=regs('v',base+8+4*h,4), wr=["Mw"])

def xdest(s): return (s//3)*GSTR + (s%3)*4096 if s < 12 else L_X12

def main_kernel(cfg):
    mf, G, items, info = build_schedule(cfg)
    pre, body = unroll(mf, G, cfg, 1)
    S = []
    A = lambda t: S.append(R(t))
    nst = [5]
    def stamp(lst=None):
        if not cfg.stamp: return
        t = R(f"s_memtime s[64:65]\ns_waitcnt lgkmcnt(0)\ns_sub_u32 s64, s64, s60\nv_writelane_b32 v0, s64, {nst[0]}")
        nst[0] += 1
        (S if lst is None else lst).append(t)
    if cfg.stamp: A(f"s_memtime s[60:61]\ns_memrealtime s[62:63]\ns_mov_b32 s{S_TRY}, 0")
    A("s_cmp_ge_u32 s2, 256\ns_cbranch_scc1 L_end")
    A("s_load_dwordx8 s[4:11], s[0:1], 0\ns_load_dwordx4 s[12:15], s[0:1], 32")
    if cfg.codepf:
        A(f"s_getpc_b64 s[{S_PC}:{S_PC+1}]\nL_pc:\nv_lshlrev_b32 v4, 7, v0\nv_min_u32 v4, L_end-L_pc, v4")
        S.append(I(f"global_load_dword v{VPFD}, v4, s[{S_PC}:{S_PC+1}]", "G", wr=[f"v{VPFD}"]))
    A("v_lshrrev_b32 v1, 6, v0\nv_and_b32 v0, 63, v0\ns_nop 0\nv_readfirstlane_b32 s16, v1")
    A(f"v_lshlrev_b32 v{VL16}, 4, v0\nv_add_u32 v{VL16B}, 4096, v{VL16}")
    A("v_and_b32 v5, 15, v0\nv_lshrrev_b32 v6, 4, v0\nv_mul_u32_u24 v7, 832, v5\nv_lshlrev_b32 v1, 4, v6\nv_add_u32 v7, v7, v1")
    A(f"s_mul_i32 s42, s16, 192\nv_add_u32 v{VOUT}, s42, v7")
    A(f"s_mul_i32 s43, s16, 13312\ns_add_u32 s43, s43, 768\nv_add_u32 v{VOUT12}, s43, v7")
    A(f"s_lshr_b32 s43, s2, 3\ns_and_b32 s43, s43, 31\ns_lshl_b32 s43, s43, 2\ns_add_u32 s43, s43, s16\ns_mul_i32 s43, s43, 22")
    A(f"v_mul_u32_u24 v{VPF}, 21846, v0\nv_lshrrev_b32 v{VPF}, 16, v{VPF}\nv_add_u32 v{VPF}, s43, v{VPF}\nv_min_u32 v{VPF}, 2703, v{VPF}\nv_lshlrev_b32 v{VPF}, 7, v{VPF}")
    A(f"v_bfe_u32 v8, v0, 2, 2\nv_and_b32 v9, 3, v0\nv_mul_u32_u24 v10, {BLK}, v6\nv_mul_u32_u24 v11, 832, v8\nv_lshlrev_b32 v12, 4, v9\nv_add3_u32 v10, v10, v11, v12")
    A(f"s_add_u32 s42, s42, {L_RING}\nv_add_u32 v{VTR}, s42, v10\nv_add_u32 v{VTR12}, {L_RING+768}, v10")
    A(f"v_mul_u32_u24 v{VUS}, 6656, v6\nv_lshl_add_u32 v{VUS}, v5, 2, v{VUS}")
    A("s_mul_i32 s42, s16, 3\nv_add_u32 v13, s42, v8\nv_cmp_eq_u32 vcc, 3, v8\nv_mov_b32 v14, 12\ns_lshr_b32 s17, s16, 1\nv_cndmask_b32 v13, v13, v14, vcc")
    A("v_mul_u32_u24 v14, 832, v6\nv_lshlrev_b32 v13, 6, v13\nv_add3_u32 v14, v14, v13, v12")
    A(f"s_lshl_b32 s{S_XM0}, s16, 10\ns_mul_i32 s{S_RM0}, s16, {BLK}\ns_add_u32 s{S_RM0}, s{S_RM0}, {L_RING}")
    A("s_mul_i32 s31, s2, 53248\ns_mul_i32 s44, s16, 6656")
    A(f"s_mov_b32 s{SRD_B+2}, 4992\ns_mov_b32 s{SRD_B+3}, 0x20000\ns_mov_b32 s{SRD_US+3}, 0x20000\ns_mov_b32 s{SRD_UD+3}, 0x20000")
    A("s_waitcnt lgkmcnt(0)")
    stamp()
    A(f"s_mov_b32 s{SRD_B}, s8\ns_mov_b32 s{SRD_B+1}, s9\ns_mov_b32 s{SRD_US}, s6\ns_mov_b32 s{SRD_US+1}, s7")
    S.append(I(f"buffer_load_dwordx4 v[16:19], v14, s[{SRD_B}:{SRD_B+3}], 0 offen", "B", wr=regs('v',16,4)))
    S.append(I(f"buffer_load_dwordx4 v[20:23], v14, s[{SRD_B}:{SRD_B+3}], 0 offen offset:3328", "B", wr=regs('v',20,4)))
    A("s_add_u32 s4, s4, s31\ns_addc_u32 s5, s5, 0\ns_sub_u32 s4, s4, 768\ns_subb_u32 s5, s5, 0")
    A("s_add_u32 s6, s6, s44\ns_addc_u32 s7, s7, 0")
    def xdma(s):
        return [R(f"s_add_u32 m0, s{S_XM0}, {xdest(s) - s*64}"),
                I(f"global_load_lds_dwordx4 v{VOUT12}, s[4:5] offset:{s*64}{cfg.xflag}", "G", wr=[f"Lxc{s}"])]
    def wdma(t, i):
        v = VL16 if i < 4 else VL16B
        txt = f"global_load_lds_dwordx4 v{v}, s[6:7] offset:{(i%4)*1024}"
        if i == 6: txt = "s_mov_b64 exec, 0xffffffff\n" + txt + "\ns_mov_b64 exec, -1"
        return I(txt, "G", wr=[f"Lw{t}"])
    def wm0(t, i): return R(f"s_add_u32 m0, s{S_RM0}, {(t % NS)*STG + (4096 if i >= 4 else 0)}")
    wadv = lambda: R("s_add_u32 s6, s6, 26624\ns_addc_u32 s7, s7, 0")
    def pro_x(s):
        a, b = xdma(s); S.extend([a, R("s_nop 0"), b])
    def pro_w(t):
        for i in range(7):
            if i in (0, 4): S.extend([wm0(t, i), R("s_nop 0")])
            S.append(wdma(t, i))
        S.append(wadv())
    pfw0 = I(f"global_load_dword v{VPFD}, v{VPF}, s[{SRD_US}:{SRD_US+1}]", "G", wr=[f"v{VPFD}"])
    def pro_seq(seq):
        for e in seq:
            if e == 'pf': S.append(pfw0)
            elif e == 'u':
                for k in range(8): S.append(unit_load(k, TT))
            elif e[0] == 'x': pro_x(int(e[1:]))
            elif e[0] == 'w': pro_w(int(e[1:]))
    pro_seq(cfg.seq0)
    for d in range(4):
        A(f"s_add_u32 s42, s16, {d}\ns_and_b32 s42, s42, 3\ns_lshl_b32 s43, s42, 14\ns_mul_i32 s44, s42, 3072")
        A(f"v_add_u32 v{VRD[d]}, s43, v{VL16}\nv_add_u32 v{VW[d]}, s44, v{VL16}")
    A(f"v_add_u32 v{VRD12}, {L_X12}, v{VL16}\nv_add_u32 v{VLW}, s{S_XM0}, v{VL16}\nv_add_u32 v{VS}, 12288, v{VLW}")
    A(f"s_mul_i32 s42, s16, {BSTR}\ns_add_u32 s42, s42, {L_BIAS}\nv_add_u32 v{VBIAS}, s42, v1")
    A(f"s_mov_b32 s{SMASK}, 0xffff0000\ns_mov_b32 s{S_SEL0}, 0x05040100\ns_mov_b32 s{S_SEL1}, 0x07060302")
    A("v_mov_b32 v24, 0.5\nv_mov_b32 v25, 1.0\nv_cndmask_b32 v26, v25, v24, vcc\ns_lshl_b32 s43, s17, 6\nv_mov_b32 v24, s43\nv_mov_b32 v27, 0\nv_cndmask_b32 v28, v27, v24, vcc")
    A("v_cmp_eq_u32 vcc, 0, v6\nv_lshlrev_b32 v29, 9, v6\nv_lshlrev_b32 v30, 7, v8\nv_cndmask_b32 v25, v26, v25, vcc\nv_cndmask_b32 v27, v28, v27, vcc")
    A("v_add3_u32 v29, v29, v30, v12\nv_add_u32 v29, s42, v29\nv_add_u32 v30, v29, v27\nv_add_u32 v31, v29, v28\nv_xor_b32 v32, 64, v30\nv_xor_b32 v33, 64, v31")
    A(f"s_lshl_b32 s17, s2, 2\ns_add_u32 s17, s17, s16")
    A(unit_addr(17))
    A(f"s_cmp_lt_u32 s17, {NUNIT}\ns_cselect_b32 s{SRD_US+2}, {6*LAYER_B}, 0\ns_cselect_b32 s{SRD_UD+2}, {WOFF + 6*LAYER_B}, 0")
    A(f"s_mov_b32 s{SRD_UD}, s14\ns_mov_b32 s{SRD_UD+1}, s15")
    A(f"s_add_u32 s{SPF}, s14, {WOFF + LAYER_B}\ns_addc_u32 s{SPF+1}, s15, 0")
    A(f"s_mul_i32 s42, s16, {6*TILE_B}\ns_add_u32 s{SOWN}, s{SPF}, s42\ns_addc_u32 s{SOWN+1}, s{SPF+1}, 0")
    A(f"s_sub_u32 s{SOWN12}, s{SOWN}, {L_X12-12288}\ns_subb_u32 s{SOWN12+1}, s{SOWN+1}, 0")
    A(f"s_lshr_b32 s42, s16, 1\ns_add_u32 s42, s42, 24\ns_mul_i32 s42, s42, {TILE_B}")
    A(f"s_add_u32 s{STS}, s{SPF}, s42\ns_addc_u32 s{STS+1}, s{SPF+1}, 0\ns_add_u32 s{SSPEC}, s42, {12288 + LAYER_B}")
    A(f"s_mov_b32 s{SRD}, s14\ns_mov_b32 s{SRD+1}, s15\ns_mov_b32 s{SRD+3}, 0x20000")
    A(f"s_and_b32 s42, s16, 1\ns_cmp_eq_u32 s42, 0\ns_cselect_b32 s{SRD+2}, {WOFF + 6*LAYER_B}, 0")
    for r in range(4):
        A(f"s_add_u32 s42, s31, {r*13312}\ns_add_u32 s{SOUT(r)}, s10, s42\ns_addc_u32 s{SOUT(r)+1}, s11, 0")
    A(f"s_mov_b32 s{SCNT}, {cfg.nlayers-3}\nv_mov_b32 v{VPOLL}, 0")
    S.append(Wait())
    for rd in range(2):
        b = 16 + 4*rd; sc = 25 if rd == 0 else 26
        for q in range(4):
            S.append(Vv(f"v_lshlrev_b32 v{36+q}, 16, v{b+q}", rd=[f"v{b+q}"], wr=[f"v{36+q}"]))
            S.append(Vv(f"v_and_b32 v{40+q}, s{SMASK}, v{b+q}", rd=[f"v{b+q}"], wr=[f"v{40+q}"]))
        for q in range(8):
            S.append(Vv(f"v_mul_f32 v{44+8*rd+q}, v{sc}, v{36+q}", rd=[f"v{36+q}"], wr=[f"v{44+8*rd+q}"]))
        if rd: A("s_mov_b64 exec, 0xffffffff")
        S.append(I(f"ds_write_b128 v{30+rd}, v[{44+8*rd}:{47+8*rd}] offset:{2048*rd}", "X", rd=regs('v',44+8*rd,4), wr=["Lb"]))
        S.append(I(f"ds_write_b128 v{32+rd}, v[{48+8*rd}:{51+8*rd}] offset:{2048*rd}", "X", rd=regs('v',48+8*rd,4), wr=["Lb"]))
        if rd: A("s_mov_b64 exec, -1")
    for t in range(8):
        S.append(I(f"ds_read_b128 {rng('v',CRAW+4*t,4)}, v{VBIAS} offset:{t*64}", "D", wr=regs('v',CRAW+4*t,4)))
    A(f"v_add_u32 v{VBIAS}, 512, v{VBIAS}")
    pro_seq(cfg.seq1)
    S.append(Wait())
    for u in range(4):
        for e in range(8):
            src = CRAW + 8*u + 4*(e & 1) + (e >> 1); dst = CQ + 8*u + e
            S.append(Vv(f"v_mov_b32 v{dst}, v{src}", rd=[f"v{src}"], wr=[f"v{dst}"]))
    pro_seq(cfg.seq2)
    stamp()

    def reads(t):
        b, slot = t % 2, t % NS
        out = []
        def xr(r):
            d = XB(b, r)
            if r == 4: txt = f"v{VLW} offset:{xdest(t)}" if t < 12 else f"v{VS} offset:{L_X12-12288}"
            else: txt = f"v{VL16} offset:{xdest(t)+r*1024}" if t < 12 else f"v{VRD12} offset:{r*1024}"
            ins = I(f"ds_read_b128 {rng('a',d,4)}, {txt}", "D", wr=regs('a',d,4)); ins.name = ({}, ('x0', t, r)); return ins
        def wr_(tt, p):
            d = WB(b, tt) + 2*p
            if tt >= 6: txt = f"v{VTR12} offset:{slot*STG + p*3328 + 8*(tt-6)}"
            else: txt = f"v{VTR} offset:{slot*STG + p*3328 + (tt//2)*64 + 8*(tt%2)}"
            ins = I(f"ds_read_b64_tr_b16 {rng('a',d,2)}, {txt}", "D", wr=regs('a',d,2)); ins.name = ({}, ('w0', t, tt)); return ins
        out += [xr(4), wr_(6,0), wr_(6,1), wr_(7,0), wr_(7,1), wr_(0,0), wr_(0,1), xr(0), xr(1), xr(2), xr(3)]
        for tt in range(1, 6): out += [wr_(tt, 0), wr_(tt, 1)]
        return out
    def bar(t, extra=()):
        need = [f"Lw{t+1}", f"Lxc{t+1}"] if t < 12 else []
        if t >= 0: need += [r for x in reads(t) for r in x.wr]
        return I("s_barrier", "BAR", rd=need + list(extra))
    S.append(Wait()); S.append(bar(-1))
    stamp()
    S += reads(0)
    S.append(Wait()); S.append(bar(0))
    stamp()

    N0 = 338
    G0 = Gaps(N0 + 400)
    slot1 = {}
    M0 = []
    order = [(6, 4), (7, 4)]
    for tt in range(6): order += [(tt, r) for r in ([0,1,2,3] if tt % 2 == 0 else [3,2,1,0])]
    acc_done = {}
    for t in range(13):
        b = t % 2
        for (tt, r) in order:
            a = ACC0(tt, r); c = (CQ + 4*tt) if t == 0 else a
            ins = I(f"v_mfma_f32_16x16x32_bf16 {rng('v',a,4)}, {rng('a',WB(b,tt),4)}, {rng('a',XB(b,r),4)}, {rng('v',c,4)}", "M",
                    rd=regs('a',WB(b,tt),4)+regs('a',XB(b,r),4), wr=regs('v',a,4), srcc=regs('v',c,4))
            exp = {x: ('w0', t, tt) for x in regs('a',WB(b,tt),4)}; exp.update({x: ('x0', t, r) for x in regs('a',XB(b,r),4)})
            if t: exp.update({x: ('a0', tt, r) for x in regs('v',a,4)})
            ins.name = (exp, ('a0', tt, r))
            acc_done[(tt, r)] = len(M0)
            M0.append(ins)
    def put(ins, p, latest=None, after=()): return G0.place(ins, p, latest, after)
    def put1(ins, p):
        assert p not in slot1 and p % 26 != 25, p
        slot1[p] = ins; ins.pos = p
    def puts(ins, p, latest=None):
        lines = ins.text.split("\n")
        while any((p+i) in slot1 or (p+i) % 26 == 25 for i in range(len(lines))): p += 1
        for i, t in enumerate(lines):
            x = ins if i == len(lines) - 1 else R(t)
            x.text = t; put1(x, p + i)
        assert latest is None or ins.pos <= latest, (ins.text, ins.pos, latest)
        return ins
    wl = [x for x in pre if x.tag.cls in ('wload', 'wupd')]
    rest = [x for x in pre if x.tag.cls not in ('wload', 'wupd')]
    xq = [s for s in range(13) if f"x{s}" not in cfg.seq0 + cfg.seq1 + cfg.seq2]
    x_issue = {s: -1 for s in range(13) if s not in xq}
    bars = {}; advs = []
    for t in range(13):
        g0 = 26*t
        if t < 12:
            bars[t+1] = put(bar(t+1), g0 + 25, g0 + 25)
            for i, x in enumerate(reads(t+1)): put(x, g0 + i, g0 + i)
        if t + NS <= 12:
            for i, p in enumerate(cfg.dma_pos):
                if i in (0, 4): put1(wm0(t+NS, i), g0 + p - 1)
                ins = wdma(t+NS, i)
                if i == 6:
                    a, bb, c = ins.text.split("\n"); put1(R(a), g0 + p); ins.text = bb + "\n" + c
                put(ins, g0 + p, g0 + p)
            advs.append(g0)
        for p in cfg.x_pos:
            if xq:
                s = xq.pop(0); a, bb = xdma(s)
                put1(a, g0 + p - 1); put(bb, g0 + p, g0 + p); x_issue[s] = t
                assert s >= t + 2
                later = [q for i, q in enumerate(cfg.dma_pos) if q > p and i not in (0, 4)]
                if later and t + NS <= 12:
                    q = later[0]; i = cfg.dma_pos.index(q)
                    prevm = max(k for k in (0, 4) if k <= i)
                    if cfg.dma_pos[prevm] < p: put1(wm0(t+NS, i), g0 + q - 1)
    assert not xq
    for g0 in advs:
        if all((g0 + q) not in slot1 for q in (cfg.dma_pos[6] + 1, cfg.dma_pos[6] + 2)) and cfg.dma_pos[6] + 2 < 25:
            puts(wadv(), g0 + cfg.dma_pos[6] + 1, g0 + 24)
        else: put(wadv(), g0 + cfg.dma_pos[6] + 1, g0 + 25)
    g = 26*cfg.unit_step
    bars[cfg.unit_step].rd += regs('v', TT, 8)
    pm = [put(unit_perm(p, h, TT), g) for h in range(2) for p in range(4)]
    st = [put(unit_store(h, TT), g, after=[(x, 1) for x in pm]) for h in range(2)]
    sig_t = st[1].pos // 26 + 2
    bars[sig_t].rd.append("Mw")
    put1(R(f"s_cmp_lt_u32 s17, {NUNIT}\ns_cselect_b32 s42, s16, 1\ns_cmp_eq_u32 s42, 0\ns_cbranch_scc1 L_sig\nL_sigret:"), 26*sig_t + 2)
    pl = put(I(f"global_load_dword v{VPOLLD}, v{VPOLL}, s[12:13] sc1", "G", wr=[f"v{VPOLLD}"]), 26*cfg.poll_step + 21)
    bars[cfg.poll_step + 2].rd.append(f"v{VPOLLD}")
    ck = 26*(cfg.poll_step + 2)
    c1 = put(Vv(f"v_cmp_ne_u32 vcc, 43, v{VPOLLD}", rd=[f"v{VPOLLD}"]), ck)
    put1(R("s_cbranch_vccnz L_wait1\nL_ok1:"), c1.pos + 2)
    pf1 = put(I(f"global_load_dword v{VPFD}, v{VPF}, s[{SPF}:{SPF+1}]{cfg.ldflag}", "G", wr=[f"v{VPFD}"]), c1.pos + 2)
    puts(R(f"s_add_u32 s{SPF}, s{SPF}, {LAYER_B}\ns_addc_u32 s{SPF+1}, s{SPF+1}, 0"), pf1.pos + 1)
    a = put(Vv(f"v_and_b32 v{VPOLL}, 16, v{VL16}", wr=[f"v{VPOLL}"]), pf1.pos + 1)
    a = put(Vv(f"v_lshl_add_u32 v{VPOLL}, v{VPOLL}, 2, 64", wr=[f"v{VPOLL}"]), a.pos)
    a = put(Vv(f"v_add_u32 v{VPOLL}, 64, v{VPOLL}", wr=[f"v{VPOLL}"]), a.pos)
    p = max(cfg.wl_from, pf1.pos + 1); prev = None
    for x in wl:
        if x.vm:
            prev = put(x, p if prev is None else prev.pos + cfg.wl_step, after=[(lastu, 0)] if prev is not None and lastu else [])
            lastu = None
        else:
            lastu = puts(x, prev.pos + 1)
    ux = []
    for j in range(3):
        for r in range(4):
            ux.append((9 + j, X0F(j, r, 0), f"v{VRD[0]} offset:{(j*4+r)*1024}"))
    ux.append((12, X0S, f"v{VS} offset:{L_X12-12288}"))
    prev = None; rds = []
    for (s, d, adr) in ux:
        tb = max(x_issue[s] + 2, 1)
        if f"Lxc{s}" not in bars[tb].rd: bars[tb].rd.append(f"Lxc{s}")
        e = max(26*tb, cfg.unpack_from)
        rd = put(I(f"ds_read_b128 {rng('v',d+4,4)}, {adr}", "D", wr=regs('v',d+4,4)), e, 26*12 - 8, after=[(prev, 1)] if prev else [])
        prev = rd; rds.append((rd, d))
    for rd, d in rds:
        last = None
        for q in range(4):
            for h in range(2):
                txt = f"v_lshlrev_b32 v{d+2*q}, 16, v{d+4+q}" if h == 0 else f"v_and_b32 v{d+2*q+1}, s{SMASK}, v{d+4+q}"
                nb = rd.pos + 8
                last = put(Vv(txt, rd=[f"v{d+4+q}"], wr=[f"v{d+2*q+h}"]), nb, after=[(last, 0)] if last else [])
    wr = []
    def ep(D0, D1, x0, e0, dst, adr, tag):
        f = []
        for e in range(8):
            a = (D0 + e) if e < 4 else (D1 + e - 4)
            f.append(put(Vv(f"v_fma_f32 v{a}, v{x0+e}, v{a}, v{x0+e}", rd=[f"v{a}", f"v{x0+e}"], wr=[f"v{a}"]), e0[e // 4] + 3))
        last = None
        for q in range(4):
            a = (D0 + 2*q) if q < 2 else (D1 + 2*q - 4)
            c = Vv(f"v_cvt_pk_bf16_f32 v{dst+q}, v{a}, v{a+1}", rd=[f"v{a}", f"v{a+1}"], wr=[f"v{dst+q}"])
            if tag: c.name = ({}, tag)
            last = put(c, 0, after=[(x, 0) for x in f] + ([(last, 0)] if last else []))
        wr.append(put(I(f"ds_write_b128 {adr[0]}, {rng('v',dst,4)} offset:{adr[1]}", "X", rd=regs('v',dst,4), wr=["Lx1"]), 0, after=[(last, 1)]))
    ep(XS, XS+4, X0S, (acc_done[(6,4)], acc_done[(7,4)]), TT, (f"v{VS}", L_X12-12288), None)
    for j in range(3):
        for r in (3, 2, 1, 0):
            ep(ACC0(2*j, r), ACC0(2*j+1, r), X0F(j, r, 0), (acc_done[(2*j, r)], acc_done[(2*j+1, r)]), XV(j, r), (f"v{VRD[0]}", (j*4+r)*1024), ('X', 1, (0, j), r))
    pl2 = put(I(f"global_load_dword v{VPOLLD}, v{VPOLL}, s[12:13] sc1", "G", wr=[f"v{VPOLLD}"]), N0)
    L0 = []
    lastg = max(p for p in range(G0.n) if G0.g[p])
    for p in range(lastg + 1):
        if p < N0: L0.append(M0[p])
        elif p == N0: L0.append(R("s_nop 3"))
        if cfg.stamp and p < N0 and p % 26 == 0 and (p // 26) in cfg.stamp_steps: stamp(L0)
        L0.append(slot1[p] if p in slot1 else Wait())
        L0 += G0.ordered(p)
    stamp(L0)
    L0.append(Wait()); L0.append(I("s_barrier", "BAR", rd=["Lx1"]))
    L0 += rest
    def rdx(slot, r):
        p, b = xreg(slot, r)
        if slot == 12: txt = f"ds_read_b128 {rng(p,b,4)}, v{VRD12} offset:{r*1024}"
        else: txt = f"ds_read_b128 {rng(p,b,4)}, v{VRD[slot[0]]} offset:{(slot[1]*4+r)*1024}"
        ins = I(txt, "D", wr=regs(p,b,4)); ins.name = ({}, ('X', 1, slot, r)); return ins
    oth = []
    for x in body:
        if x.kind == "M" and x.layer == 1 and x.pos < 52:
            tg = [v for v in x.name[0].values() if v[0] == 'X'][0]
            if tg[2] == 12 or tg[2][0] != 0: oth.append(rdx(tg[2], tg[3]))
    for _ in range(cfg.first_reads): L0.append(oth.pop(0))
    L0.append(Wait())
    nb = []
    for k, x in enumerate(body):
        nb.append(x)
        if isinstance(x, Wait) and x.layer == 1:
            extra = []
            if oth: extra.append(oth.pop(0))
            if x.pos == cfg.chk2:
                extra.append(Vv(f"v_lshrrev_b32 v{VL16B}, 6, v{VPOLL}", wr=[f"v{VL16B}"]))
                extra.append(Vv(f"v_add_u32 v{VL16B}, 82, v{VL16B}", wr=[f"v{VL16B}"]))
            if x.pos == cfg.chk2 + 1:
                extra.append(Vv(f"v_cmp_ne_u32 vcc, v{VL16B}, v{VPOLLD}", rd=[f"v{VPOLLD}"]))
            if x.pos == cfg.chk2 + 4:
                extra.append(R("s_cbranch_vccnz L_wait2\nL_ok2:"))
            for e in extra: e.layer, e.pos = x.layer, x.pos
            nb += extra
    body = nb
    full = S + L0 + body
    insert_waits(full)
    init = {f"s{SOWN}": ('s',1,0), f"s{SOWN12}": ('s',1,0), f"s{STS}": ('s',1,'S'), f"s{SSPEC}": ('s',1), f"v{VBIAS}": ('vb',1)}
    i0 = len(S) + len(L0)
    fix = R(""); fix.wr = regs('v', XS, 8); fix.name = ({}, ('XS', 1))
    check_tags(full[:i0] + [fix] + full[i0:], init)
    SPLIT = cfg.split
    segs = {}
    for x in body: segs.setdefault(min(x.layer + (1 if x.pos >= SPLIT else 0), cfg.nlayers), []).append(x)
    loop = [segs[k] for k in range(2, cfg.nlayers)]
    for sg in loop[1:]:
        assert len(sg) == len(loop[0]) and all(a.text == b.text and a.kind == b.kind for a, b in zip(sg, loop[0]))
    for tup in zip(*loop):
        if isinstance(tup[0], Wait):
            vm = [w.vmn for w in tup if w.vmn is not None]; lg = [w.lgn for w in tup if w.lgn is not None]
            for w in tup:
                w.vmn = min(vm) if vm else None; w.lgn = min(lg) if lg else None
    verify_waits(full)
    fin = segs[cfg.nlayers]
    errs = check_hazards(full)
    assert not errs, errs
    out = [f".globl {KN}\n.p2align 8\n.type {KN},@function\n{KN}:"]
    out += render(S) + render(L0) + render(segs[1])
    if cfg.loopalign: out.append(".p2align 6")
    out.append("L_loop:")
    if cfg.stamp:
        out.append(f"s_memtime s[64:65]\ns_waitcnt lgkmcnt(0)\ns_sub_u32 s64, s64, s60\ns_sub_u32 m0, {nst[0]+3}, s{SCNT}\ns_nop 0\nv_writelane_b32 v0, s64, m0")
        nst[0] += 4
    out += render(loop[0])
    out.append(f"s_sub_u32 s{SCNT}, s{SCNT}, 1\ns_cbranch_scc0 L_loop")
    if cfg.stamp:
        t = []; stamp(t); out += render(t)
    out += render(fin)
    if cfg.stamp:
        out.append("s_memtime s[66:67]\ns_waitcnt vmcnt(0)\ns_memtime s[68:69]\ns_memrealtime s[70:71]\ns_waitcnt lgkmcnt(0)")
        out.append("s_sub_u32 s66, s66, s60\ns_sub_u32 s68, s68, s60")
        out.append(f"v_writelane_b32 v0, s{S_TRY}, 0\nv_writelane_b32 v0, s66, 1\nv_writelane_b32 v0, s68, 2\nv_writelane_b32 v0, s62, 3\nv_writelane_b32 v0, s70, 4")
        out.append(f"s_lshl_b32 s42, s2, 2\ns_add_u32 s42, s42, s16\ns_lshl_b32 s42, s42, 7\ns_add_u32 s42, s42, {4<<20}")
        out.append(f"v_lshrrev_b32 v9, 2, v{VL16}\nv_add_u32 v9, s42, v9\ns_mov_b64 exec, 0xffffffff\nglobal_store_dword v9, v0, s[14:15]")
    out.append("s_endpgm")
    out.append(f"""L_sig:
s_and_b32 s42, s2, 1
s_lshl_b32 s42, s42, 6
s_add_u32 s42, s42, 128
s_cmp_lt_u32 s2, 43
s_cselect_b32 s42, 0, s42
s_mov_b64 exec, 1
v_mov_b32 v{TT}, s42
v_mov_b32 v{TT+1}, 1
global_atomic_add v{TT}, v{TT+1}, s[12:13] sc1
s_mov_b64 exec, -1
s_branch L_sigret""")
    for k, cmp_ in ((1, f"v_cmp_ne_u32 vcc, 43, v{VPOLLD}"), (2, f"v_cmp_ne_u32 vcc, v{VL16B}, v{VPOLLD}")):
        out.append(f"""L_wait{k}:
s_mov_b32 s{S_RET}, {k}
s_mov_b32 s{S_TRY}, {cfg.tries}
L_spin{k}:
s_sub_u32 s{S_TRY}, s{S_TRY}, 1
s_cbranch_scc1 L_self
s_sleep 8
global_load_dword v{VPOLLD}, v{VPOLL}, s[12:13] sc1
s_waitcnt vmcnt(0)
{cmp_}
s_nop 4
s_cbranch_vccnz L_spin{k}
s_branch L_ok{k}""")
    fb = [f"L_self:\ns_mov_b32 s{SRD_US+2}, {6*LAYER_B}\ns_mov_b32 s{SRD_UD+2}, {WOFF + 6*LAYER_B}\ns_mov_b32 s17, 0\nL_selfloop:", unit_addr(17)]
    fb += [unit_load(e, TT).text for e in range(8)] + ["s_waitcnt vmcnt(0)"]
    fb += [unit_perm(p, h, TT).text for h in range(2) for p in range(4)] + [unit_store(h, TT).text for h in range(2)]
    fb.append(f"s_waitcnt vmcnt(0)\ns_add_u32 s17, s17, 1\ns_cmp_lt_u32 s17, {NUNIT}\ns_cbranch_scc1 L_selfloop")
    fb.append(f"s_cmp_eq_u32 s{S_RET}, 1\ns_cbranch_scc1 L_ok1\ns_branch L_ok2")
    out += fb
    out.append("L_end:\ns_endpgm")
    info.update(sig_t=sig_t, l0_last=lastg, x_issue=x_issue)
    return "\n".join(out), info

class C2(Cfg):
    stamp = False
    stamp_steps = (1, 2, 4, 6, 8, 10, 12)
    codepf = True
    xflag = ""
    stflag = " sc1"
    split = 54
    loopalign = True
    seq0 = ['pf', 'x0', 'x1', 'w0']
    seq1 = ['x2', 'w1']
    seq2 = ['x3', 'w2', 'u']
    dma_pos = [1, 4, 7, 10, 13, 16, 22]
    x_pos = [19, 24]
    unit_step = 1
    unpack_from = 26*4
    poll_step = 6
    wl_from = 26*10 + 1
    wl_step = 3
    first_reads = 8
    chk2 = 40
    tries = 20000

HEAD = """; DCN-v2 cross network, 6 layers, B=16384, D=416, bf16 (written out by my own scheduling script)
"""
def gen(cfg):
    mk, info = main_kernel(cfg)
    txt = HEAD + f"; @launch grid=(256,1,1) block=(256,1,1) lds={LDS_BYTES}\n"
    txt += '.amdgcn_target "amdgcn-amd-amdhsa--gfx950"\n.text\n' + mk + "\n"
    txt += '.section .rodata,"a"\n.p2align 6\n' + kd(KN, 512, 256)
    return txt, info

if __name__ == "__main__":
    cfg = C2()
    for a in sys.argv[2:]:
        k, v = a.split("=", 1); assert hasattr(cfg, k), k; setattr(cfg, k, eval(v))
    txt, info = gen(cfg)
    open(sys.argv[1], "w").write(txt)
    print(info, len(txt.splitlines()), "lines")
```

```python
from core import *

NM = 340
LAYER_B = 346112
TILE_B = 13312

def XV(j, r): return 4 + (j*4 + r)*4
def X12(r): return 52 + r*4
def X0F(j, r, e): return 68 + (j*4 + r)*8 + e
X0S, XS = 164, 172
def ACC(r): return 180 + 4*r
def HOLD(r): return 196 + 4*r
TT = 212
BIAS, SPEC = 228, 232
VRD = [236, 237, 238, 239]
VRD12, VS, VBIAS = 240, 241, 242
VW = [243, 244, 245, 246]
VPF, VOUT, VOUT12, VPFD = 247, 248, 249, 250
def XA(d, j, r): return ((d-1)*12 + j*4 + r)*4
NRING = 28
def RING(i): return 144 + 4*(i % NRING)
SW = 16
SOWN, SOWN12, STS, SRD, SSPEC, SMASK, SCNT, SPF = 18, 20, 22, 24, 28, 29, 30, 32
def SOUT(r): return 34 + 2*r
GSTR = 12288
L_X12 = 49152
L_PART = 53248
L_BIAS = L_PART + 4096

def xreg(slot, r):
    if slot == 12: return ('v', X12(r))
    d, j = slot
    return ('v', XV(j, r)) if d == 0 else ('a', XA(d, j, r))

GROUPS_OWN = [[(0,0),(1,0),(2,0),(3,0),12], [(d,1) for d in range(4)], [(d,2) for d in range(4)]]
GROUPS_TS = [[(0,0),(2,0),(0,1),(2,1)], [(0,2),(2,2),12]]
TILES = [0, 'S', 1, 2, 3, 4, 5]

class Item:
    def __init__(self, make, cls):
        self.make, self.cls = make, cls
        self.proto = make(1)
        self.proto.tag = self
    @property
    def pos(self): return self.proto.pos

class Cfg:
    ldflag = " sc1"
    stflag = ""
    lead = None
    pf_pos = 54
    pw_dist = 3
    barA_pos = 286
    unpack_early = 30
    nlayers = 6

def build_schedule(cfg):
    mf = []
    loads = []
    first_use, last_use = {}, {}
    x_first, x_last = {}, {}
    tile_start, acc_end, acc_start, bias_last = {}, {}, {}, {}
    ringidx = {}
    nf = 0
    for t in TILES:
        groups = GROUPS_TS if t == 'S' else GROUPS_OWN
        for grp in groups:
            for slot in grp:
                loads.append((t, slot))
                if not (t == 'S' and slot == 12):
                    ringidx[(t, slot)] = nf; nf += 1
    assert nf == 84
    def wreg(t, slot):
        if t == 'S' and slot == 12: return ('v', SPEC)
        return ('a', RING(ringidx[(t, slot)]))
    m = 0
    for t in TILES:
        groups = GROUPS_TS if t == 'S' else GROUPS_OWN
        tile_start[t] = m
        for gi, grp in enumerate(groups):
            rr = [0,1,2,3] if (t == 'S' or gi % 2 == 0) else [3,2,1,0]
            for ri, r in enumerate(rr):
                ks = grp if ri % 2 == 0 else grp[::-1]
                for ki, slot in enumerate(ks):
                    first = gi == 0 and ki == 0
                    wp, wb = wreg(t, slot); xp, xb = xreg(slot, r)
                    def mk(l, t=t, slot=slot, r=r, first=first, wp=wp, wb=wb, xp=xp, xb=xb):
                        c = BIAS if first else ACC(r)
                        ins = I(f"v_mfma_f32_16x16x32_bf16 {rng('v',ACC(r),4)}, {rng(wp,wb,4)}, {rng(xp,xb,4)}, {rng('v',c,4)}",
                                "M", rd=regs(wp,wb,4)+regs(xp,xb,4), wr=regs('v',ACC(r),4), srcc=regs('v',c,4))
                        exp = {x: ('W', l, t, slot) for x in regs(wp,wb,4)}
                        exp.update({x: ('X', l, slot, r) for x in regs(xp,xb,4)})
                        exp.update({x: (('B', l, t) if first else ('A', l, t, r)) for x in regs('v',c,4)})
                        ins.name = (exp, ('A', l, t, r))
                        return ins
                    mf.append(mk)
                    first_use.setdefault((t, slot), m); last_use[(t, slot)] = m
                    x_first.setdefault((slot, r), m); x_last[(slot, r)] = m
                    if first: acc_start[(t, r)] = m; bias_last[t] = m
                    acc_end[(t, r)] = m
                    m += 1
    assert m == NM
    G = Gaps(NM)
    items = []
    def add(make, cls, earliest, latest=None, after=()):
        it = Item(make, cls)
        G.place(it.proto, earliest, latest, [(a.proto, d) for a, d in after])
        items.append(it)
        return it
    def nxt(t):
        i = TILES.index(t)
        return (TILES[i+1], 0) if i+1 < len(TILES) else (TILES[0], NM)

    ring_order = [x for x in loads if x in ringidx]
    lead = 10**9
    for i, key in enumerate(loads):
        if key in ringidx:
            f = ringidx[key]
            prev = ring_order[(f - NRING) % 84]
            lu = last_use[prev] - (NM if f < NRING else 0)
        else:
            lu = last_use[key] - NM
        lead = min(lead, 4*i - lu)
    if cfg.lead is not None:
        assert cfg.lead <= lead; lead = cfg.lead
    minlead = min(first_use[k] - (4*i - lead) for i, k in enumerate(loads))
    ld_items = {}
    for i, (t, slot) in enumerate(loads):
        wp, wb = wreg(t, slot)
        def mk(l, t=t, slot=slot, wp=wp, wb=wb):
            if t == 'S' and slot == 12:
                ins = I(f"buffer_load_dwordx4 {rng(wp,wb,4)}, v{VRD12}, s[{SRD}:{SRD+3}], s{SSPEC} offen{cfg.ldflag}", "B", wr=regs(wp,wb,4))
                exp = {f"s{SSPEC}": ('s', l)}
            elif slot == 12:
                ins = I(f"global_load_dwordx4 {rng(wp,wb,4)}, v{VRD12}, s[{SOWN12}:{SOWN12+1}]{cfg.ldflag}", "G", wr=regs(wp,wb,4))
                exp = {f"s{SOWN12}": ('s', l, t)}
            else:
                d, j = slot
                sb = STS if t == 'S' else SOWN
                off = f" offset:{j*1024}" if j else ""
                ins = I(f"global_load_dwordx4 {rng(wp,wb,4)}, v{VW[d]}, s[{sb}:{sb+1}]{off}{cfg.ldflag}", "G", wr=regs(wp,wb,4))
                exp = {f"s{sb}": ('s', l, t)}
            ins.name = (exp, ('W', l, t, slot))
            return ins
        ld_items[(t, slot)] = add(mk, 'wload', 4*i - lead, 4*i - lead)

    def upd(reg, delta, tagf, tagt, after, latest, pair=True):
        def mk(l):
            txt = f"s_add_u32 s{reg}, s{reg}, {delta}" + (f"\ns_addc_u32 s{reg+1}, s{reg+1}, 0" if pair else "")
            ins = I(txt, "S", rd=[f"s{reg}"], wr=[f"s{reg}"]); ins.name = ({f"s{reg}": tagf(l)}, tagt(l)); return ins
        return add(mk, 'wupd', after.pos, latest)
    for t in range(6):
        nt = (t + 1) % 6
        delta = TILE_B if t < 5 else LAYER_B - 5*TILE_B
        off = NM if t == 5 else 0
        tf = lambda l, t=t: ('s', l, t)
        tt = lambda l, t=t, nt=nt: ('s', l + (1 if t == 5 else 0), nt)
        upd(SOWN, delta, tf, tt, ld_items[(t, (3, 2))], ld_items[(nt, (0, 0))].pos + off - 1)
        upd(SOWN12, delta, tf, tt, ld_items[(t, 12)], ld_items[(nt, 12)].pos + off - 1)
    upd(STS, LAYER_B, lambda l: ('s', l, 'S'), lambda l: ('s', l+1, 'S'), ld_items[('S', (2, 2))], None)
    upd(SSPEC, LAYER_B, lambda l: ('s', l), lambda l: ('s', l+1), ld_items[('S', 12)], None, pair=False)

    for i, t in enumerate(TILES):
        pt = TILES[i-1]
        e = bias_last[pt] + 2 - (NM if i == 0 else 0)
        def mk(l, t=t):
            off = (6 if t == 'S' else t)*64
            ins = I(f"ds_read_b128 {rng('v',BIAS,4)}, v{VBIAS} offset:{off}", "D", rd=[f"v{VBIAS}"], wr=regs('v',BIAS,4))
            ins.name = ({f"v{VBIAS}": ('vb', l)}, ('B', l, t)); return ins
        lo = max(e, tile_start[t] - 14) if i else e
        b = add(mk, 'bias', lo, tile_start[t] - 6)
        if t == 5: b5 = b
        if t == 0: b0 = b
    def mk(l):
        ins = I(f"v_add_u32 v{VBIAS}, 512, v{VBIAS}", "V", rd=[f"v{VBIAS}"], wr=[f"v{VBIAS}"]); ins.name = ({f"v{VBIAS}": ('vb', l)}, ('vb', l+1)); return ins
    add(mk, 'upd', b5.pos + 1, NM + b0.pos - 1)

    def ep_items(t, order_only=False):
        pass
    xw = {}
    unpack_last = {}
    def epilogue(t, u_earliest):
        j, h = t // 2, t % 2
        nt, off = nxt(t)
        for r in range(4):
            dl = acc_start[(nt, r)] + off - 1
            dst = HOLD(r) if h == 0 else TT + 4*r
            us = []
            for q in range(4):
                def mku(l, j=j, h=h, r=r, q=q, dst=dst, t=t):
                    src = XV(j, r) + q
                    txt = f"v_lshlrev_b32 v{dst+q}, 16, v{src}" if h == 0 else f"v_and_b32 v{dst+q}, s{SMASK}, v{src}"
                    ins = I(txt, "V", rd=[f"v{src}"], wr=[f"v{dst+q}"])
                    ins.name = ({f"v{src}": ('X', l, (0, j), r)}, ('U', l, t, r, q))
                    return ins
                us.append(mku)
            fs = []
            for q in range(4):
                def mkf(l, j=j, h=h, r=r, q=q, dst=dst, t=t):
                    a, b = X0F(j, r, 2*q+h), ACC(r)+q
                    ins = I(f"v_fmac_f32 v{dst+q}, v{a}, v{b}", "V", rd=[f"v{dst+q}", f"v{a}", f"v{b}"], wr=[f"v{dst+q}"])
                    ins.name = ({f"v{dst+q}": ('U', l, t, r, q), f"v{b}": ('A', l, t, r)}, ('F', l, t, r, q))
                    return ins
                fs.append(add(mkf, 'ep', acc_end[(t, r)] + 3, dl))
            if h == 1:
                cs = []
                for q in range(4):
                    def mkc(l, r=r, q=q, t=t):
                        ins = I(f"v_cvt_pk_bf16_f32 v{HOLD(r)+q}, v{HOLD(r)+q}, v{TT+4*r+q}", "V", rd=[f"v{HOLD(r)+q}", f"v{TT+4*r+q}"], wr=[f"v{HOLD(r)+q}"])
                        ins.name = ({f"v{HOLD(r)+q}": ('F', l, t-1, r, q), f"v{TT+4*r+q}": ('F', l, t, r, q)}, ('C', l, t, r))
                        return ins
                    cs.append(add(mkc, 'ep', 0, after=[(fs[3], 0)]))
                def mkx(l, j=j, r=r, t=t):
                    if l == cfg.nlayers - 1:
                        ins = I(f"global_store_dwordx4 v{VOUT}, {rng('v',HOLD(r),4)}, s[{SOUT(r)}:{SOUT(r)+1}] offset:{j*64}{cfg.stflag}", "T", rd=regs('v',HOLD(r),4))
                    else:
                        ins = I(f"ds_write_b128 v{VRD[0]}, {rng('v',HOLD(r),4)} offset:{(j*4+r)*1024}", "X", rd=regs('v',HOLD(r),4), wr=[f"Lx{j}"])
                    ins.name = ({x: ('C', l, t, r) for x in regs('v',HOLD(r),4)}, None)
                    return ins
                xw[(j, r)] = add(mkx, 'ep', 0, after=[(c, 1) for c in cs])
            ep_pending.append((t, r, us, fs))
    ep_pending = []
    for t in (5, 0, 1, 2, 3, 4): epilogue(t, None)

    def mkbar(needs, nm):
        def mk(l):
            ins = I("s_barrier", "BAR", rd=needs); ins.name = ({}, None); return ins
        return mk
    barB = add(mkbar(["Lx2"], 'B'), 'barB', 0, after=[(xw[(2, 3)], 5)])
    def mkread(slot, r):
        def mk(l):
            p, b = xreg(slot, r)
            if slot == 12: txt = f"ds_read_b128 {rng(p,b,4)}, v{VRD12} offset:{r*1024}"
            else: txt = f"ds_read_b128 {rng(p,b,4)}, v{VRD[slot[0]]} offset:{(slot[1]*4+r)*1024}"
            ins = I(txt, "D", wr=regs(p,b,4)); ins.name = ({}, ('X', l+1, slot, r)); return ins
        return mk
    for r in range(4):
        for slot in GROUPS_OWN[2]:
            add(mkread(slot, r), 'xread', max(barB.pos + 1, x_last[(slot, r)] + 1), NM + x_first[(slot, r)] - 6)

    pw = []
    for r in range(4):
        def mk(l, r=r):
            ins = I(f"ds_write_b128 v{VRD[0]}, {rng('v',ACC(r),4)} offset:{L_PART+r*1024}", "X", rd=regs('v',ACC(r),4), wr=["Lp"])
            ins.name = ({x: ('A', l, 'S', r) for x in regs('v',ACC(r),4)}, None); return ins
        pw.append(add(mk, 'sh', acc_end[('S', r)] + cfg.pw_dist, acc_start[(1, r)] - 2))
    barC = add(mkbar(["Lp"], 'C'), 'barC', 0, after=[(pw[3], 5)])
    pr = []
    for w2 in range(4):
        def mk(l, w2=w2):
            ins = I(f"ds_read_b128 {rng('v',TT+4*w2,4)}, v{VS} offset:{L_PART-L_X12+w2*GSTR}", "D", wr=regs('v',TT+4*w2,4))
            ins.name = ({}, ('P', l, w2)); return ins
        pr.append(add(mk, 'sh', barC.pos + 1))
    fm = []
    for h in range(2):
        for q in range(4):
            def mka(l, h=h, q=q):
                a, b = TT+8*h+q, TT+8*h+4+q
                ins = I(f"v_add_f32 v{a}, v{a}, v{b}", "V", rd=[f"v{a}", f"v{b}"], wr=[f"v{a}"])
                ins.name = ({f"v{a}": ('P', l, 2*h), f"v{b}": ('P', l, 2*h+1)}, ('PS', l, h, q)); return ins
            ad = add(mka, 'sh', 0, after=[(pr[2*h+1], 6)])
            def mkf(l, h=h, q=q):
                a = TT+8*h+q
                ins = I(f"v_fmac_f32 v{XS+2*q+h}, v{X0S+2*q+h}, v{a}", "V", rd=[f"v{XS+2*q+h}", f"v{X0S+2*q+h}", f"v{a}"], wr=[f"v{XS+2*q+h}"])
                ins.name = ({f"v{a}": ('PS', l, h, q), f"v{XS+2*q+h}": ('XS', l)}, ('XS', l+1)); return ins
            fm.append(add(mkf, 'sh', 0, after=[(ad, 0)]))
    cv = []
    for q in range(4):
        def mk(l, q=q):
            ins = I(f"v_cvt_pk_bf16_f32 v{TT+12+q}, v{XS+2*q}, v{XS+2*q+1}", "V", rd=[f"v{XS+2*q}", f"v{XS+2*q+1}"], wr=[f"v{TT+12+q}"])
            ins.name = ({f"v{XS+2*q}": ('XS', l+1), f"v{XS+2*q+1}": ('XS', l+1)}, ('CS', l)); return ins
        cv.append(add(mk, 'sh', 0, after=[(f, 0) for f in fm]))
    def mk(l):
        if l == cfg.nlayers - 1:
            ins = I(f"global_store_dwordx4 v{VOUT12}, {rng('v',TT+12,4)}, s[{SOUT(0)}:{SOUT(0)+1}]{cfg.stflag}", "T", rd=regs('v',TT+12,4))
        else:
            ins = I(f"ds_write_b128 v{VS}, {rng('v',TT+12,4)}", "X", rd=regs('v',TT+12,4), wr=["Lx12"])
        ins.name = ({x: ('CS', l) for x in regs('v',TT+12,4)}, None); return ins
    x12w = add(mk, 'sh', 0, after=[(c, 1) for c in cv])

    barA = add(mkbar(["Lx0", "Lx1", "Lx12"], 'A'), 'barA', cfg.barA_pos, after=[(xw[(1, 3)], 5)])
    early = []
    for gi in (0, 1):
        for r in ([0,1,2,3] if gi == 0 else [3,2,1,0]):
            for slot in GROUPS_OWN[gi]:
                early.append((slot, r))
    prev = barA
    for slot, r in early:
        prev = add(mkread(slot, r), 'xread', x_last[(slot, r)] + 1, NM + x_first[(slot, r)] - 6, after=[(prev, 1)])

    for t, r, us, fs in ep_pending:
        j, h = t // 2, t % 2
        if h == 0:
            pj = (j - 1) % 3
            e = xw[(pj, r)].pos + 1 - (NM if j == 0 else 0)
            e = max(e, x_first[((0, j), r)])
        else:
            if j == 0: e = x12w.pos + 1
            else: e = xw[(j-1, r)].pos
        e = max(e, fs[0].pos - cfg.unpack_early)
        for q in range(4):
            add(us[q], 'ep', e, fs[q].pos - 1)

    if cfg.pf_pos is not None:
        def mk(l):
            ins = I(f"global_load_dword v{VPFD}, v{VPF}, s[{SPF}:{SPF+1}]{cfg.ldflag}", "G", wr=[f"v{VPFD}"]); ins.name = ({}, None); return ins
        pf = add(mk, 'pf', cfg.pf_pos)
        def mk(l):
            ins = I(f"s_add_u32 s{SPF}, s{SPF}, {LAYER_B}\ns_addc_u32 s{SPF+1}, s{SPF+1}, 0", "S"); ins.name = ({}, None); return ins
        add(mk, 'pf', pf.pos + 1)
    info = dict(lead=lead, minlead=minlead, barA=barA.pos, barB=barB.pos, barC=barC.pos, x12w=x12w.pos)
    return mf, G, items, info

def check_tags(stream, init):
    cur = dict(init)
    for ins in stream:
        if isinstance(ins, Wait) or ins.name is None: continue
        exp, out = ins.name
        for r, tg in exp.items():
            assert cur.get(r) == tg, f"dataflow: {ins.text}: {r} holds {cur.get(r)}, expected {tg}"
        if out is not None:
            for r in ins.wr: cur[r] = out

def unroll(mf, G, cfg, l0):
    NL = cfg.nlayers
    def keep(it, l):
        if l < l0 or l >= NL: return False
        if l == NL - 1 and it.cls in ('xread', 'barA', 'barB', 'pf', 'upd'): return False
        return True
    pre, stream = [], []
    for T in range(l0 - 1, NL + 1):
        for p in range(NM):
            if l0 <= T < NL:
                ins = mf[p](T); ins.layer, ins.pos = T, p; stream.append(ins)
            w = Wait(); w.layer, w.pos = T, p
            lst = []
            for proto in G.ordered(p):
                it = proto.tag
                l = T - (it.pos // NM)
                if keep(it, l):
                    ins = it.make(l); ins.layer, ins.pos = T, p; ins.tag = it; lst.append(ins)
            if T < l0: pre += lst
            elif T < NL: stream += [w] + lst
            elif lst: stream += [w] + lst
    return pre, stream
```

```python
import sys
from fast import *

KN = "standalone__dcn_v2_cross__recsys_kernel"
WOFF = 65536
L_RING = 53248
BLK = 6664
STG = 4*BLK
L_B0 = L_RING + 4*STG
LDS_BYTES = L_B0 + 1024
def slot(t): return (t + 3) % 4
AORD = [0, 6, 7, 1, 8, 2, 9, 3, 10, 4, 11, 5, 12]
NUNIT = 845

for u in range(1024): assert (u*24819) >> 22 == u // 169
for u in range(169): assert (u*5042) >> 16 == u // 13
for u in range(64): assert (u*21846) >> 16 == u // 3

VL16, VL16B, VLW, VTR, VTR12, VUS, VPOLL, VPOLLD = 2, 3, 251, 252, 253, 254, 255, 1
def WB(b, t): return b*32 + t*4
def XB(b, r): return 64 + b*20 + r*4
def ACC0(t, r):
    if t >= 6: return XS + 4*(t-6)
    j, h = t // 2, t % 2
    if h == 0: return XV(j, r)
    return [ACC(0), X12(0), HOLD(0)][j] + 4*r
VXE, VXO, VXEW, VXOW, VXOWN, VXD = BIAS+2, BIAS+3, VLW, VOUT, VOUT12, SPEC
VTRB, VTR12B = SPEC+1, SPEC+2
CQ = 68
BT_A0, BT_SC = SPEC+3, 163
CRAW = 100
S_XM0, S_RM0 = 46, 47
SRD_US, SRD_UD, S_US0, S_US1, S_UD0, S_UD1 = 48, 52, 56, 57, 58, 59
S_SEL0, S_SEL1, SRD_B, S_PC = 72, 73, 76, 80
S_RET, S_TRY, S_SIG = 74, 75, 82
S_OWNX, S_PAR = 84, 88

def kd(name, nv, acc, ns=102):
    return f""".amdhsa_kernel {name}
  .amdhsa_next_free_vgpr {nv}
  .amdhsa_next_free_sgpr {ns}
  .amdhsa_accum_offset {acc}
  .amdhsa_group_segment_fixed_size 0
  .amdhsa_kernarg_size 48
  .amdhsa_user_sgpr_count 2
  .amdhsa_user_sgpr_kernarg_segment_ptr 1
  .amdhsa_system_sgpr_workgroup_id_x 1
  .amdhsa_float_denorm_mode_32 3
.end_amdhsa_kernel
"""
def R(txt): return I(txt, "S")
def Vv(txt, rd=(), wr=()): return I(txt, "V", rd=rd, wr=wr)

def unit_addr(ureg):
    return (f"s_mul_i32 s42, s{ureg}, 24819\ns_lshr_b32 s42, s42, 22\n"
            f"s_mul_i32 s43, s42, 169\ns_sub_u32 s43, s{ureg}, s43\n"
            f"s_mul_i32 s44, s43, 5042\ns_lshr_b32 s44, s44, 16\n"
            f"s_mul_i32 s45, s44, 13\ns_sub_u32 s45, s43, s45\n"
            f"s_add_u32 s42, s42, 1\ns_mul_i32 s42, s42, {LAYER_B}\n"
            f"s_mul_i32 s{S_US0}, s44, 26624\ns_add_u32 s{S_US0}, s{S_US0}, s42\ns_lshl_b32 s43, s45, 6\ns_add_u32 s{S_US0}, s{S_US0}, s43\n"
            f"s_add_u32 s{S_US1}, s{S_US0}, 3328\n"
            f"s_mul_i32 s{S_UD0}, s45, 26624\ns_add_u32 s{S_UD0}, s{S_UD0}, s42\ns_lshl_b32 s43, s44, 10\ns_add_u32 s{S_UD0}, s{S_UD0}, s43\n"
            f"s_add_u32 s{S_UD0}, s{S_UD0}, {WOFF}\ns_add_u32 s{S_UD1}, s{S_UD0}, {TILE_B}")
def unit_load(e, base):
    return I(f"buffer_load_dword v{base+e}, v{VUS}, s[{SRD_US}:{SRD_US+3}], s{S_US0 if e < 4 else S_US1} offen offset:{(e%4)*832}", "B", wr=[f"v{base+e}"])
def unit_perm(p, h, base):
    return Vv(f"v_perm_b32 v{base+8+4*h+p}, v{base+2*p+1}, v{base+2*p}, s{S_SEL1 if h else S_SEL0}", rd=[f"v{base+2*p+1}", f"v{base+2*p}"], wr=[f"v{base+8+4*h+p}"])
def unit_store(h, base):
    return I(f"buffer_store_dwordx4 {rng('v',base+8+4*h,4)}, v{VL16}, s[{SRD_UD}:{SRD_UD+3}], s{S_UD1 if h else S_UD0} offen sc1", "T", rd=regs('v',base+8+4*h,4), wr=["Mw"])


VWS, VWS12 = VTR, VTR12
def transpose_stores(body, cfg):
    NL = cfg.nlayers
    key = lambda x: (x.layer - (NL-1))*NM + x.pos
    head = [x for x in body if key(x) < cfg.split]
    tail = [x for x in body if key(x) >= cfg.split]
    G = Gaps(NM + 200)
    mf = {}
    moved = []
    stores = []
    for x in tail:
        p = key(x)
        if x.kind == "M": mf[p] = x
        elif isinstance(x, Wait): pass
        elif x.kind == "T": stores.append((p, x))
        elif x.name and x.name[1] and x.name[1][0] == 'U' and (x.name[1][2] % 2 == 0 or x.name[1][2] == 1): moved.append((p, x))
        else: x.pos = p; G.g[p].append(x)
    fpos = {x.name[1][1:]: x.pos for g in G.g for x in g if x.name and x.name[1] and x.name[1][0] == 'F'}
    prev = None
    for txt in [f"v_bfe_u32 v{VLW}, v{VL16}, 5, 2", f"v_lshrrev_b32 v{VWS}, 8, v{VL16}", f"v_xor_b32 v{VLW}, v{VLW}, v{VWS}",
                f"v_and_b32 v{VWS}, 0xf0, v{VL16}", f"v_lshlrev_b32 v{VWS}, 2, v{VWS}", f"v_lshl_add_u32 v{VWS}, v{VLW}, 4, v{VWS}",
                f"s_add_u32 s42, s{S_XM0}, {L_X12}", f"v_add_u32 v{VWS12}, s42, v{VWS}", f"s_mul_i32 s42, s16, {GSTR}", f"v_add_u32 v{VWS}, s42, v{VWS}",
                f"v_bfe_u32 v{VLW}, v{VL16}, 7, 2", f"v_bfe_u32 v{VOUT}, v{VL16}, 4, 2", f"v_xor_b32 v{VLW}, v{VLW}, v{VOUT}",
                f"v_lshrrev_b32 v{VOUT}, 6, v{VL16}", f"v_mul_u32_u24 v{VOUT}, 832, v{VOUT}", f"v_lshl_add_u32 v{VOUT}, v{VLW}, 4, v{VOUT}",
                f"s_mul_i32 s42, s16, 13312", f"s_add_u32 s42, s42, 768", f"v_add_u32 v{VOUT12}, s42, v{VOUT}", f"s_mul_i32 s42, s16, 192", f"v_add_u32 v{VOUT}, s42, v{VOUT}"]:
        prev = G.place(Vv(txt) if txt[0] == 'v' else R(txt), cfg.split + 4 if prev is None else prev.pos + 1)
    free = {}; lastdef = 0
    for p, x in stores: G.g[p].append(I('', 'X'))
    for n, (p, x) in enumerate(stores):
        d = int(x.rd[0][1:]); shared = d == TT + 12
        assert p > prev.pos
        if shared: wa, ra = f"v{VWS12}", f"v{VS}"; wo = ""
        else:
            j = int(x.text.split("offset:")[1].split()[0]) // 64; r = (d - HOLD(0)) // 4
            wa, wo, ra = f"v{VWS}", f" offset:{(j*4+r)*1024}", f"v{VRD[0]} offset:{(j*4+r)*1024}"
        w = I(f"ds_write_b128 {wa}, {rng('v',d,4)}{wo}", "X", rd=x.rd); w.name = x.name; w.pos = p; G.g[p] = [y for y in G.g[p] if y.text] + [w]
        if cfg.st_pos and n < len(cfg.st_pos) and cfg.st_pos[n]:
            src = x.rd; t_ = SPEC
            x.text = x.text.replace(rng('v',d,4), rng('v',t_,4)); x.rd = regs('v',t_,4)
            rd = I(f"ds_read_b128 {rng('v',t_,4)}, {ra}", "D", wr=x.rd); rd.name = ({}, ('TR', n))
            G.place(rd, max(p + 1, cfg.st_pos[n] - cfg.ts_lag, lastdef + 1))
            x.name = ({q: ('TR', n) for q in x.rd}, None)
            G.place(x, rd.pos + cfg.ts_lag); lastdef = x.pos
            for q in src: free.setdefault(q, []).append((p, p))
            continue
        rd = I(f"ds_read_b128 {rng('v',d,4)}, {ra}", "D", wr=x.rd); rd.name = ({}, ('TR', n))
        G.place(rd, p + 1)
        x.name = ({q: ('TR', n) for q in x.rd}, None)
        fl = cfg.stflags[min(n, len(cfg.stflags)-1)] if cfg.stflags else None
        if fl is not None: x.text = x.text.replace(cfg.stflag, fl)
        G.place(x, rd.pos + cfg.ts_lag)
        for q in x.rd: free.setdefault(q, []).append((p, x.pos))
    for p, x in moved:
        tg = x.name[1]; dl = fpos[tg[1:]] - 1
        e = max([p] + [b + 1 for a, b in free.get(x.wr[0], []) if a < dl])
        G.place(x, e, dl)
    out = []
    for p in range(cfg.split, G.n):
        lst = G.ordered(p)
        if p in mf: out.append(mf[p])
        if p in mf or lst:
            w = Wait(); out.append(w); out += lst
            for y in [w] + lst: y.layer, y.pos = NL - 1 + p // NM, p % NM
    return head + out

def main_kernel(cfg):
    mf, G, items, info = build_schedule(cfg)
    pre, body = unroll(mf, G, cfg, 1)
    S = []
    A = lambda t: S.append(R(t))
    nst = [5]
    TM, T0R = ("s_memrealtime", 62) if cfg.stamp == 'rt' else ("s_memtime", 60)
    def stamp(lst=None):
        if not cfg.stamp: return
        t = R(f"{TM} s[64:65]\ns_waitcnt lgkmcnt(0)\ns_sub_u32 s64, s64, s{T0R}\nv_writelane_b32 v0, s64, {nst[0]}")
        nst[0] += 1
        (S if lst is None else lst).append(t)
    if cfg.stamp: A(f"s_memtime s[60:61]\ns_memrealtime s[62:63]\ns_mov_b32 s{S_TRY}, 0")
    A("s_cmp_ge_u32 s2, 256\ns_cbranch_scc1 L_end")
    A("s_load_dwordx8 s[4:11], s[0:1], 0\ns_load_dwordx4 s[12:15], s[0:1], 32")
    if cfg.codepf:
        A(f"s_getpc_b64 s[{S_PC}:{S_PC+1}]\nL_pc:")
        if cfg.codepf_share:
            A("s_lshr_b32 s42, s2, 3\ns_and_b32 s42, s42, 31\nv_and_b32 v4, 0xe0, v0\nv_add_u32 v4, s42, v4\nv_lshlrev_b32 v4, 7, v4")
        else: A("v_lshlrev_b32 v4, 7, v0")
        A("v_min_u32 v4, L_end-L_pc, v4")
        S.append(I(f"global_load_dword v{VPFD}, v4, s[{S_PC}:{S_PC+1}]", "G", wr=[f"v{VPFD}"]))
    A("v_lshrrev_b32 v1, 6, v0\nv_and_b32 v0, 63, v0\ns_nop 0\nv_readfirstlane_b32 s16, v1")
    A(f"v_lshlrev_b32 v{VL16}, 4, v0\nv_add_u32 v{VL16B}, 4096, v{VL16}")
    A("v_and_b32 v5, 15, v0\nv_lshrrev_b32 v6, 4, v0\nv_lshlrev_b32 v1, 4, v6\nv_bfe_u32 v8, v0, 2, 2\nv_and_b32 v12, 48, v2")
    A(f"s_mul_i32 s43, s16, 13312\nv_lshrrev_b32 v9, 3, v0\nv_mul_u32_u24 v9, 1664, v9\nv_and_b32 v10, 32, v0\nv_and_b32 v11, 0x70, v{VL16}\nv_xor_b32 v10, v11, v10\nv_add3_u32 v{VXD}, v9, v10, s43")
    A("s_mul_i32 s42, s16, 3\nv_add_u32 v13, s42, v6\nv_cmp_eq_u32 vcc, 3, v6\nv_mov_b32 v14, 12\nv_lshlrev_b32 v15, 2, v5\nv_cndmask_b32 v13, v13, v14, vcc\nv_lshl_add_u32 v14, v13, 6, v15")
    A(f"s_lshl_b32 s96, s16, 8\ns_add_u32 s96, s96, {L_B0}")
    A(f"s_lshl_b32 s{S_XM0}, s16, 10\ns_mul_i32 s{S_RM0}, s16, {BLK}\ns_add_u32 s{S_RM0}, s{S_RM0}, {L_RING}")
    A("s_mul_i32 s31, s2, 53248\ns_mul_i32 s83, s16, 6656")
    def setup_pf():
      A(f"s_lshr_b32 s44, s2, 3\ns_and_b32 s44, s44, 31\ns_lshl_b32 s44, s44, 2\ns_add_u32 s44, s44, s16")
      A(f"v_lshrrev_b32 v{VPF}, 4, v{VL16}\nv_mul_u32_u24 v{VPF}, 21846, v{VPF}\nv_lshrrev_b32 v{VPF}, 16, v{VPF}\nv_lshl_add_u32 v{VPF}, v{VPF}, 7, s44\nv_min_u32 v{VPF}, 2703, v{VPF}\nv_lshlrev_b32 v{VPF}, 7, v{VPF}")
    early_pf = any(e.startswith('pf') for e in cfg.seq)
    if early_pf: setup_pf()
    sigsetup = R('')
    def setup_a():
        A("s_mul_i32 s42, s16, 192")
        A(f"v_mul_u32_u24 v10, {BLK}, v6\nv_mul_u32_u24 v11, 832, v8\nv_add3_u32 v10, v10, v11, v12")
        A(f"s_add_u32 s42, s42, {L_RING}\nv_add_u32 v{VTR}, s42, v10\nv_add_u32 v{VTR12}, {L_RING+768}, v10")
        A(f"v_add_u32 v{VTRB}, {2*STG}, v{VTR}\nv_add_u32 v{VTR12B}, {2*STG}, v{VTR12}")
        A(f"v_lshlrev_b32 v34, 2, v5\nv_and_b32 v34, 32, v34\nv_xor_b32 v34, v34, v1\nv_lshl_add_u32 v34, v5, 6, v34\nv_and_b32 v35, 1, v5")
        A(f"v_mul_u32_u24 v36, 24576, v35\nv_add_u32 v{VXE}, v34, v36\nv_xor_b32 v34, 64, v34\nv_mul_u32_u24 v36, 28672, v35\nv_add_u32 v{VXO}, v34, v36")
        A(f"v_add_u32 v{VXEW}, s{S_XM0}, v{VXE}\nv_add_u32 v{VXOW}, s{S_XM0}, v{VXO}")
        A(f"v_add_u32 v{VBIAS}, s96, v1\ns_mov_b32 s{SMASK}, 0xffff0000")
    def setup_b():
        A(f"v_mul_u32_u24 v{VUS}, 6656, v6\nv_lshl_add_u32 v{VUS}, v5, 2, v{VUS}")
        A(f"s_lshl_b32 s17, s2, 2\ns_add_u32 s17, s17, s16")
        A(unit_addr(17))
        A(f"s_cmp_lt_u32 s17, {NUNIT}\ns_cselect_b32 s{SRD_US+2}, {6*LAYER_B}, 0\ns_cselect_b32 s{SRD_UD+2}, {WOFF + 6*LAYER_B}, 0")
        A(f"s_mov_b32 s{SRD_US+3}, 0x20000\ns_mov_b32 s{SRD_UD+3}, 0x20000\ns_mov_b32 s{S_SEL0}, 0x05040100\ns_mov_b32 s{S_SEL1}, 0x07060302")
    def setup_c():
        A(f"s_mul_i32 s97, s16, 3\ns_mul_i32 s99, s16, {GSTR}\ns_add_u32 s99, s99, {L_BIAS}\ns_lshr_b32 s98, s16, 1\ns_lshl_b32 s98, s98, 6")
        S.append(sigsetup)
        if not early_pf: setup_pf()
        for d in range(4):
            A(f"s_add_u32 s42, s16, {d}\ns_and_b32 s42, s42, 3\ns_mul_i32 s44, s42, 3072\ns_lshl_b32 s43, s44, 2")
            A(f"v_add_u32 v{VRD[d]}, s43, v{VL16}\nv_add_u32 v{VW[d]}, s44, v{VL16}")
        A(f"v_add_u32 v{VRD12}, {L_X12}, v{VL16}\nv_add_u32 v{VS}, s{S_XM0}, v{VRD12}")
        A(f"s_mov_b32 s{SCNT}, {cfg.nlayers-3}\nv_and_b32 v{VPOLL}, 16, v{VL16}\nv_lshlrev_b32 v{VPOLL}, 2, v{VPOLL}")
        for j in range(3):
            A(f"s_add_u32 s42, s97, {j}\ns_lshr_b32 s42, s42, 1\ns_lshl_b32 s{S_OWNX+j}, s42, 12")
        A(f"s_bitcmp1_b32 s16, 0\ns_cselect_b64 s[{S_PAR}:{S_PAR+1}], -1, 0")
    def setup_p():
        A(f"s_add_u32 s{SPF}, s14, {WOFF + LAYER_B}\ns_addc_u32 s{SPF+1}, s15, 0")
        A(f"s_mul_i32 s42, s16, {6*TILE_B}\ns_add_u32 s{SOWN}, s{SPF}, s42\ns_addc_u32 s{SOWN+1}, s{SPF+1}, 0")
        A(f"s_sub_u32 s{SOWN12}, s{SOWN}, {L_X12-12288}\ns_subb_u32 s{SOWN12+1}, s{SOWN+1}, 0")
        A(f"s_lshr_b32 s42, s16, 1\ns_add_u32 s42, s42, 24\ns_mul_i32 s42, s42, {TILE_B}")
        A(f"s_add_u32 s{STS}, s{SPF}, s42\ns_addc_u32 s{STS+1}, s{SPF+1}, 0\ns_add_u32 s{SSPEC}, s42, {12288 + LAYER_B + WOFF - L_X12}")
        A(f"s_mov_b32 s{SRD}, s14\ns_mov_b32 s{SRD+1}, s15\ns_mov_b32 s{SRD+3}, 0x20000")
        A(f"s_and_b32 s42, s16, 1\ns_cmp_eq_u32 s42, 0\ns_cselect_b32 s{SRD+2}, {WOFF + 6*LAYER_B}, 0")
        for r in range(4):
            A(f"s_add_u32 s42, s31, {r*13312}\ns_add_u32 s{SOUT(r)}, s10, s42\ns_addc_u32 s{SOUT(r)+1}, s11, 0")
    def do_karg():
        A("s_waitcnt lgkmcnt(0)")
        stamp()
        A(f"s_mov_b32 s{SRD_US}, s6\ns_mov_b32 s{SRD_US+1}, s7")
        A("s_add_u32 s4, s4, s31\ns_addc_u32 s5, s5, 0")
        A("s_add_u32 s6, s6, s83\ns_addc_u32 s7, s7, 0")
    def do_cq():
        S.append(Wait())
        for u in range(4):
            S.append(I(f"ds_read_b128 {rng('v',CRAW+4*u,4)}, v{VBIAS} offset:{u*64}", "D", rd=["Lb0"], wr=regs('v',CRAW+4*u,4)))
    def do_cu():
        for u in range(4):
            S.append(Wait())
            for q in range(4):
                S.append(Vv(f"v_lshlrev_b32 v{CQ+8*u+2*q}, 16, v{CRAW+4*u+q}", rd=[f"v{CRAW+4*u+q}"], wr=[f"v{CQ+8*u+2*q}"]))
                S.append(Vv(f"v_and_b32 v{CQ+8*u+2*q+1}, s{SMASK}, v{CRAW+4*u+q}", rd=[f"v{CRAW+4*u+q}"], wr=[f"v{CQ+8*u+2*q+1}"]))
            if cfg.mul0:
                for q in range(4):
                    a = CQ+8*u+2*q
                    S.append(Vv(f"v_pk_add_f32 v[{a}:{a+1}], v[{a}:{a+1}], 1.0 op_sel_hi:[1,0]", rd=[f"v{a}", f"v{a+1}"], wr=[f"v{a}", f"v{a+1}"]))
    def xdma(s):
        o = AORD[s]*128
        return [R(f"s_add_u32 m0, s{S_XM0}, {AORD[s]*4096 - o}"),
                I(f"global_load_lds_dwordx4 v{VXD}, s[4:5] offset:{o}{cfg.xflag}", "G", wr=[f"Lxc{s}"])]
    def wdma(t, i):
        v = VL16 if i < 4 else VL16B
        txt = f"global_load_lds_dwordx4 v{v}, s[6:7] offset:{(i%4)*1024}"
        if i == 6: txt = "s_mov_b64 exec, 0xffffffff\n" + txt + "\ns_mov_b64 exec, -1"
        return I(txt, "G", wr=[f"Lw{t}"])
    def wm0(t, i): return R(f"s_add_u32 m0, s{S_RM0}, {slot(t)*STG + (4096 if i >= 4 else 0)}")
    def wadv(t):
        x = "s_add_u32 s6, s6, 26624\ns_addc_u32 s7, s7, 0"
        return R(x)
    def pro_x(s):
        a, b = xdma(s); S.extend([a, R("s_nop 0"), b])
    def pro_w(t, lo=0, hi=7):
        for i in range(lo, hi):
            if i in (lo, 4): S.extend([wm0(t, i), R("s_nop 0")])
            S.append(wdma(t, i))
        if hi == 7: S.append(wadv(t))
    def pf_w0(lo, hi):
        m = ((1 << min(3*hi, 64)) - 1) ^ ((1 << 3*lo) - 1)
        txt = f"global_load_dword v{VPFD}, v{VPF}, s[{SRD_US}:{SRD_US+1}]"
        if m != (1 << 64) - 1:
            txt = f"s_mov_b32 exec_lo, {hex(m & 0xffffffff)}\ns_mov_b32 exec_hi, {hex(m >> 32)}\n{txt}\ns_mov_b64 exec, -1"
        return I(txt, "G", wr=[f"v{VPFD}"])
    def pro_seq(seq):
        for e in seq:
            if e == 'pf': S.append(pf_w0(0, 22))
            elif e == 'pfa': S.append(pf_w0(*cfg.pfa))
            elif e == 'pfb': S.append(pf_w0(cfg.pfa[1], 22))
            elif e == 'u':
                A(f"s_mov_b32 s{SRD_UD}, s14\ns_mov_b32 s{SRD_UD+1}, s15")
                for k in range(8): S.append(unit_load(k, TT))
            elif e == 'us':
                S.append(Wait())
                S.extend([unit_perm(p, h, TT) for h in range(2) for p in range(4)] + [unit_store(h, TT) for h in range(2)])
            elif e == 'b0':
                A("s_mov_b32 m0, s96\ns_nop 0")
                S.append(I("global_load_lds_dword v14, s[8:9]", "G", wr=["Lb0"]))
            elif e == 'tw':
                A(f"v_and_b32 v15, 16, v{VL16}\nv_mul_u32_u24 v15, {(3<<20)//16}, v15")
                S.append(I(f"global_load_dword v{VPFD}, v15, s[14:15]", "G", wr=[f"v{VPFD}"]))
            elif e == 'to':
                A(f"v_mov_b32 v15, s31")
                S.append(I(f"global_load_dword v{VPFD}, v15, s[10:11]", "G", wr=[f"v{VPFD}"]))
            elif e[0] == 'x': pro_x(int(e[1:]))
            elif e[0] == 'w' and e[-1] == 'a': pro_w(int(e[1:-1]), 0, cfg.wsplit)
            elif e[0] == 'w' and e[-1] == 'b': pro_w(int(e[1:-1]), cfg.wsplit, 7)
            elif e[0] == 'w': pro_w(int(e[1:]))
            else: raise ValueError(e)
    def reads(t):
        b, sl = t % 2, slot(t)
        out = []
        def xr(r):
            d = XB(b, r)
            if r == 4: txt = f"v{VXOW if t % 2 else VXEW} offset:{(t//2)*4096}"
            else: txt = f"v{VXO if t % 2 else VXE} offset:{(t//2)*4096 + r*1024}"
            ins = I(f"ds_read_b128 {rng('a',d,4)}, {txt}", "D", rd=[txt.split()[0]], wr=regs('a',d,4)); ins.name = ({}, ('x0', t, r)); return ins
        def wr_(tt, p):
            d = WB(b, tt) + 2*p
            if tt >= 6: txt = f"v{VTR12B if sl >= 2 else VTR12} offset:{(sl%2)*STG + p*3328 + 8*(tt-6)}"
            else: txt = f"v{VTRB if sl >= 2 else VTR} offset:{(sl%2)*STG + p*3328 + (tt//2)*64 + 8*(tt%2)}"
            ins = I(f"ds_read_b64_tr_b16 {rng('a',d,2)}, {txt}", "D", wr=regs('a',d,2)); ins.name = ({}, ('w0', t, tt)); return ins
        out += [xr(4), wr_(6,0), wr_(6,1), wr_(7,0), wr_(7,1), wr_(0,0), wr_(0,1), xr(0), xr(1), xr(2), xr(3)]
        for tt in range(1, 6): out += [wr_(tt, 0), wr_(tt, 1)]
        return out
    def bar(t, extra=()):
        need = [f"Lw{t+1}"] + [f"Lxc{i}" for i in range(min(t+2, 12) + 1)] if t < 12 else []
        if t >= 0: need += [r for x in reads(t) for r in x.wr]
        return I("s_barrier", "BAR", rd=need + list(extra))
    for e in cfg.seq:
        if e in ('sa', 'sb', 'sc', 'sp'): dict(sa=setup_a, sb=setup_b, sc=setup_c, sp=setup_p)[e]()
        elif e == 'karg': do_karg()
        elif e == 'cq': do_cq()
        elif e == 'cu': do_cu()
        elif e.startswith('wait:'):
            S.append(Wait()); S.append(I("s_nop 0", "S", rd=[e[5:]])); stamp()
        elif e == 'st': stamp()
        elif e == 'rd0':
            S.append(Wait()); S.append(bar(-1)); stamp(); S.extend(reads(0))
        else: pro_seq([e])
    S.append(Wait()); S.append(bar(0))
    stamp()

    deferred = []
    for e in ('sc', 'sp'):
        if e not in cfg.seq:
            n0 = len(S); dict(sc=setup_c, sp=setup_p)[e](); deferred += S[n0:]; del S[n0:]
    N0 = 338
    NS = cfg.ns
    G0 = Gaps(N0 + 400)
    slot1 = {}
    M0 = []
    order = [(6, 4), (7, 4)]
    for tt in range(6): order += [(tt, r) for r in ([0,1,2,3] if tt % 2 == 0 else [3,2,1,0])]
    acc_done = {}
    for t in range(13):
        b = t % 2
        for (tt, r) in order:
            a = ACC0(tt, r); c = (CQ + 4*tt) if t == 0 else a
            ins = I(f"v_mfma_f32_16x16x32_bf16 {rng('v',a,4)}, {rng('a',WB(b,tt),4)}, {rng('a',XB(b,r),4)}, {rng('v',c,4)}", "M",
                    rd=regs('a',WB(b,tt),4)+regs('a',XB(b,r),4), wr=regs('v',a,4), srcc=regs('v',c,4))
            exp = {x: ('w0', t, tt) for x in regs('a',WB(b,tt),4)}; exp.update({x: ('x0', t, r) for x in regs('a',XB(b,r),4)})
            if t: exp.update({x: ('a0', tt, r) for x in regs('v',a,4)})
            ins.name = (exp, ('a0', tt, r))
            acc_done[(tt, r)] = len(M0)
            M0.append(ins)
    def put(ins, p, latest=None, after=()): return G0.place(ins, p, latest, after)
    def put1(ins, p):
        assert p not in slot1 and p % 26 != 25, p
        slot1[p] = ins; ins.pos = p
    def puts(ins, p, latest=None):
        lines = ins.text.split("\n")
        while any((p+i) in slot1 or (p+i) % 26 == 25 for i in range(len(lines))): p += 1
        for i, t in enumerate(lines):
            x = ins if i == len(lines) - 1 else R(t)
            x.text = t; put1(x, p + i)
        assert latest is None or ins.pos <= latest, (ins.text, ins.pos, latest)
        return ins
    wl = [x for x in pre if x.tag.cls in ('wload', 'wupd')]
    rest = [x for x in pre if x.tag.cls not in ('wload', 'wupd')]
    xq = [s for s in range(13) if f"x{s}" not in cfg.seq]
    x_issue = {s: -1 for s in range(13) if s not in xq}
    bars = {}; advs = []; xadvs = []
    for t in range(13):
        g0 = 26*t
        if t < 12:
            bars[t+1] = put(bar(t+1), g0 + 25, g0 + 25)
            rp = [q for q in range(25) if not (t + NS <= 12 and q == (cfg.dma_pos_x if xq else cfg.dma_pos)[6])]
            for i, x in enumerate(reads(t+1)): put(x, g0 + rp[i], g0 + rp[i])
        ev = []
        dp = cfg.dma_pos_x if xq else cfg.dma_pos
        if t + NS <= 12:
            ev += [(p, wm0(t+NS, i), wdma(t+NS, i), i) for i, p in enumerate(dp)]
            advs.append((g0, dp[6]))
        for p in cfg.x_pos:
            if xq:
                s = xq.pop(0); a, bb = xdma(s); ev.append((p, a, bb, None)); x_issue[s] = t
                assert s >= t + 3
                xadvs.append((g0 + p, s))
        cur = None; lastp = -2
        for p, m, ins, i in sorted(ev, key=lambda e: e[0]):
            if m.text != cur:
                assert p - 1 > lastp, (t, p)
                put1(m, g0 + p - 1); cur = m.text
            if i == 6:
                a, bb, c = ins.text.split("\n"); put1(R(a), g0 + p); ins.text = bb + "\n" + c
            put(ins, g0 + p, g0 + p); lastp = p
    assert not xq
    def put_adv(ins, p, latest):
        ln = ins.text.split("\n")
        for i in range(0, len(ln), 2):
            x = puts(R(ln[i] + "\n" + ln[i+1]), p, latest); p = x.pos + 1
    for g0, dl in advs: put_adv(wadv(g0 // 26 + NS), g0 + dl + 1, g0 + 26)
    g = 26*cfg.unit_step
    tt_free = 0
    if 'us' in cfg.seq: sig_t = cfg.sig_step
    else:
        bars[cfg.unit_step].rd += regs('v', TT, 8)
        pm = [put(unit_perm(p, h, TT), g) for h in range(2) for p in range(4)]
        st = [put(unit_store(h, TT), g + cfg.late, after=[(x, 1) for x in pm]) for h in range(2)]
        sig_t = st[1].pos // 26 + cfg.lag_st; tt_free = st[1].pos + 2
    bars[sig_t].rd.append("Mw")
    sig_steps = list(range(sig_t, min(sig_t + cfg.nB, 11) + 1))
    for t in sig_steps:
        x = puts(R(f"s_cmp_eq_u32 s{S_SIG}, {t}\ns_cbranch_scc1 L_sig{t}"), 26*t + cfg.sig_pos, 26*t + 24)
        x.text += f"\nL_sigret{t}:"
    nb_ = len(sig_steps) - 1
    sigsetup.text = (f"s_lshr_b32 s42, s2, 1\ns_mul_i32 s43, s42, {65536 // nb_ + 1}\ns_lshr_b32 s43, s43, 16\ns_mul_i32 s43, s43, {nb_}\ns_sub_u32 s42, s42, s43\ns_add_u32 s42, s42, {sig_t + 1}\n"
                     f"s_cmp_lt_u32 s2, 44\ns_cselect_b32 s42, {sig_t}, s42\ns_cselect_b32 s43, 0, 128\n"
                     f"s_cmp_lt_u32 s2, 212\ns_cselect_b32 s42, s42, 255\ns_cmp_eq_u32 s16, 0\ns_cselect_b32 s{S_SIG}, s42, 255\n"
                     f"s_and_b32 s42, s2, 1\ns_lshl_b32 s42, s42, 6\ns_add_u32 s42, s42, s43\nv_mov_b32 v{BIAS}, s42\nv_mov_b32 v{BIAS+1}, 1")
    assert all((u*(65536 // nb_ + 1)) >> 16 == u // nb_ for u in range(128))
    lines = [l for x in deferred for l in x.text.split("\n") if l]
    groups = []
    for l in lines:
        if l.startswith(("s_addc", "s_subb", "s_cselect")): groups[-1].append(l)
        else: groups.append([l])
    p = cfg.def_from; defpos = {}
    for gr in groups:
        if gr[0].startswith("v_"): x = put(Vv(gr[0]), p)
        else: x = puts(R("\n".join(gr)), p)
        for l in gr: defpos[l.split()[1].rstrip(",")] = x.pos
        p = x.pos + (0 if not gr[0].startswith("v_") and False else 1)
    if groups:
        assert defpos[f"v{BIAS+1}"] < 26*sig_steps[0] + cfg.sig_pos and defpos["s98"] < cfg.bt_from
        assert defpos[f'v{VPOLL}'] < 26*cfg.poll_step + cfg.late and p < 26*(cfg.poll_step + cfg.lag_poll), p
    pl = put(I(f"global_load_dword v{VPOLLD}, v{VPOLL}, s[12:13] sc1", "G", wr=[f"v{VPOLLD}"]), 26*cfg.poll_step + cfg.late)
    bars[cfg.poll_step + cfg.lag_poll].rd.append(f"v{VPOLLD}")
    ck = 26*(cfg.poll_step + cfg.lag_poll)
    c1 = put(Vv(f"v_cmp_gt_u32 vcc, 22, v{VPOLLD}", rd=[f"v{VPOLLD}"]), ck)
    br = puts(R("s_cbranch_vccnz L_wait1"), c1.pos + 2); br.text += "\nL_ok1:"
    pf1 = put(I(f"global_load_dword v{VPFD}, v{VPF}, s[{SPF}:{SPF+1}]{cfg.ldflag}", "G", wr=[f"v{VPFD}"]), max(br.pos, ck + cfg.pf1_off))
    puts(R(f"s_add_u32 s{SPF}, s{SPF}, {LAYER_B}\ns_addc_u32 s{SPF+1}, s{SPF+1}, 0"), pf1.pos + 1)
    p = max(cfg.wl_from, pf1.pos + 1); prev = None
    for x in wl:
        if x.vm:
            prev = put(x, max(p if prev is None else prev.pos + cfg.wl_step, 26*12 + 4 if x.kind == 'B' else 0), after=[(lastu, 0)] if prev is not None and lastu else [])
            lastu = None
        else:
            lastu = puts(x, prev.pos + 1)
    T0, T1, T2 = 160, 161, 162
    x = None
    for txt in [f"v_bfe_u32 v{T0}, v{VL16}, 6, 2", f"v_cmp_eq_u32 vcc, 3, v{T0}", f"v_add_u32 v{T1}, s97, v{T0}", f"v_mov_b32 v{T2}, 12",
                f"v_cndmask_b32 v{T1}, v{T1}, v{T2}, vcc", f"v_mov_b32 v{T2}, 0.5", f"v_cndmask_b32 v{BT_SC}, 1.0, v{T2}, vcc",
                f"v_mov_b32 v{T2}, s98", f"v_cndmask_b32 v{T2}, 0, v{T2}, vcc",
                f"v_lshl_add_u32 v{T2}, v{T0}, 7, v{T2}", f"v_and_b32 v{T0}, 48, v{VL16}", f"v_lshl_add_u32 v{T1}, v{T1}, 6, v{T0}",
                f"v_add3_u32 v{T2}, v{T2}, v{T0}, s99", f"v_lshrrev_b32 v{T0}, 8, v{VL16}", f"v_lshl_add_u32 v{BT_A0}, v{T0}, 9, v{T2}",
                f"v_mul_u32_u24 v{T0}, 832, v{T0}", f"v_add_u32 v{T0}, v{T0}, v{T1}"]:
        x = put(Vv(txt), cfg.bt_from if x is None else x.pos + 1)
    bl = [put(I(f"global_load_dwordx4 {rng('v',TT+8*rd+4,4)}, v{T0}, s[8:9] offset:{1664*rd}", "G", wr=regs('v',TT+8*rd+4,4)), max(x.pos + 1 + rd, tt_free, cfg.bl_from)) for rd in range(2)]
    tb = bl[1].pos // 26 + cfg.lag_bl
    bars[tb].rd += regs('v', TT+4, 4) + regs('v', TT+12, 4)
    u_ = []
    for rd in range(2):
        for q in range(4):
            lo, hi = TT+8*rd+q, TT+8*rd+4+q
            x = put(Vv(f"v_lshlrev_b32 v{lo}, 16, v{hi}", rd=[f"v{hi}"], wr=[f"v{lo}"]), 26*tb)
            y = put(Vv(f"v_and_b32 v{hi}, s{SMASK}, v{hi}", rd=[f"v{hi}"], wr=[f"v{hi}"]), x.pos)
            u_ += [put(Vv(f"v_mul_f32 v{r_}, v{BT_SC}, v{r_}", rd=[f"v{r_}"], wr=[f"v{r_}"]), y.pos) for r_ in (lo, hi)]
    x = None
    for h in range(2):
        for rd in range(2):
            x = put(I(f"ds_write_b128 v{BT_A0}, {rng('v',TT+8*rd+4*h,4)} offset:{1024*rd}", "X", rd=regs('v',TT+8*rd+4*h,4)), max(26*11, 0 if x is None else x.pos + 1), after=[(y, 1) for y in u_])
        if h == 0: x = put(Vv(f"v_xor_b32 v{BT_A0}, 64, v{BT_A0}"), x.pos + 1)
    y = put(Vv(f"v_and_b32 v{VBIAS}, 48, v{VBIAS}"), 26*2)
    put(Vv(f"v_add3_u32 v{VBIAS}, v{VBIAS}, s99, v{T0}"), put(Vv(f"v_mov_b32 v{T0}, 512"), max(y.pos, bl[1].pos + 1)).pos + 1)
    bt_last = x; bt_valu = max(y.pos for y in u_)
    assert bt_valu < c1.pos
    ux = []
    for j in range(3):
        for r in range(4):
            ux.append((10 + j, X0F(j, r, 0), f"v{VXOWN} offset:{r*1024}"))
    ux.append((12, X0S, f"v{VXEW} offset:24576"))
    prev = None; rds = []; unp = {}
    for (s, d, adr) in ux:
        tb = max(x_issue[s] + cfg.lag_x, 1)
        if f"Lxc{s}" not in bars[tb].rd: bars[tb].rd.append(f"Lxc{s}")
        e = max(26*tb, cfg.unpack_from, bt_valu + 1 if d == X0F(2, 3, 0) else 0)
        if len(rds) % 4 == 0 and len(rds) < 12:
            j = len(rds) // 4
            a_, b_ = (VXE, VXO) if j % 2 == 0 else (VXO, VXE)
            prev = put(Vv(f"v_cndmask_b32 v{VXOWN}, v{a_}, v{b_}, s[{S_PAR}:{S_PAR+1}]", wr=[f"v{VXOWN}"]), e - 4 if prev is None else prev.pos)
            prev = put(Vv(f"v_add_u32 v{VXOWN}, s{S_OWNX+j}, v{VXOWN}", wr=[f"v{VXOWN}"]), prev.pos)
            assert prev.pos > defpos.get(f"s[{S_PAR}:{S_PAR+1}]", 0) + 1
        rd = put(I(f"ds_read_b128 {rng('v',d+4,4)}, {adr}", "D", rd=[adr.split()[0]], wr=regs('v',d+4,4)), e, 26*12 - 2, after=[(prev, 1)] if prev else [])
        prev = rd; rds.append((rd, d)); bars[12].rd += regs('v', d+4, 4)
    for rd, d in rds:
        last = None
        for q in range(4):
            for h in range(2):
                txt = f"v_lshlrev_b32 v{d+2*q}, 16, v{d+4+q}" if h == 0 else f"v_and_b32 v{d+2*q+1}, s{SMASK}, v{d+4+q}"
                nb = rd.pos + 8
                last = put(Vv(txt, rd=[f"v{d+4+q}"], wr=[f"v{d+2*q+h}"]), nb, after=[(last, 0)] if last else [])
                unp[d] = last
    wr = []
    def ep(D0, D1, x0, e0, dst, adr, tag):
        f = []
        for e in range(8):
            a = (D0 + e) if e < 4 else (D1 + e - 4)
            if cfg.mul0:
                ee = max(e0[e // 4] + 3, unp[x0].pos + 1)
                probe = Vv("x"); q = ee
                while not G0.fits(q, probe): q += 1
                if cfg.pk0 and e % 2 == 0 and q >= N0:
                    f.append(put(Vv(f"v_pk_mul_f32 v[{a}:{a+1}], v[{x0+e}:{x0+e+1}], v[{a}:{a+1}]", rd=[f"v{a}", f"v{a+1}", f"v{x0+e}", f"v{x0+e+1}"], wr=[f"v{a}", f"v{a+1}"]), ee)); skip = True
                elif e % 2 == 1 and skip: skip = False
                else:
                    f.append(put(Vv(f"v_mul_f32 v{a}, v{x0+e}, v{a}", rd=[f"v{a}", f"v{x0+e}"], wr=[f"v{a}"]), ee)); skip = False
                continue
            f.append(put(Vv(f"v_fma_f32 v{a}, v{x0+e}, v{a}, v{x0+e}", rd=[f"v{a}", f"v{x0+e}"], wr=[f"v{a}"]), e0[e // 4] + 3, after=[(unp[x0], 1)]))
        last = None
        for q in range(4):
            a = (D0 + 2*q) if q < 2 else (D1 + 2*q - 4)
            c = Vv(f"v_cvt_pk_bf16_f32 v{dst+q}, v{a}, v{a+1}", rd=[f"v{a}", f"v{a+1}"], wr=[f"v{dst+q}"])
            if tag: c.name = ({}, tag)
            last = put(c, bt_last.pos + 1 if dst == TT else 0, after=[(x, 0) for x in f] + ([(last, 0)] if last else []))
        wr.append(put(I(f"ds_write_b128 {adr[0]}, {rng('v',dst,4)} offset:{adr[1]}", "X", rd=regs('v',dst,4), wr=["Lx1"]), 0, after=[(last, 1)]))
    ep(XS, XS+4, X0S, (acc_done[(6,4)], acc_done[(7,4)]), TT, (f"v{VS}", 0), None)
    for j in range(3):
        for r in (3, 2, 1, 0):
            ep(ACC0(2*j, r), ACC0(2*j+1, r), X0F(j, r, 0), (acc_done[(2*j, r)], acc_done[(2*j+1, r)]), XV(j, r), (f"v{VRD[0]}", (j*4+r)*1024), ('X', 1, (0, j), r))
    pl2 = put(I(f"global_load_dword v{VPOLLD}, v{VPOLL}, s[12:13] offset:128 sc1", "G", wr=[f"v{VPOLLD}"]), N0)
    assert min(x.pos for x in wl if x.kind == "B") >= max(26*12, bt_last.pos + 1)
    L0 = []
    lastg = max(p for p in range(G0.n) if G0.g[p])
    for p in range(lastg + 1):
        if p < N0: L0.append(M0[p])
        elif p == N0:
            L0.append(R("s_nop 3"))
            if cfg.st2: stamp(L0)
        if cfg.stamp and p < N0 and p % 26 == 0 and (p // 26) in cfg.stamp_steps: stamp(L0)
        L0.append(slot1[p] if p in slot1 else Wait())
        L0 += G0.ordered(p)
    stamp(L0)
    L0.append(Wait()); L0.append(I("s_barrier", "BAR", rd=["Lx1"]))
    if cfg.st2: stamp(L0)
    L0 += rest
    def rdx(slot, r):
        p, b = xreg(slot, r)
        if slot == 12: txt = f"ds_read_b128 {rng(p,b,4)}, v{VRD12} offset:{r*1024}"
        else: txt = f"ds_read_b128 {rng(p,b,4)}, v{VRD[slot[0]]} offset:{(slot[1]*4+r)*1024}"
        ins = I(txt, "D", wr=regs(p,b,4)); ins.name = ({}, ('X', 1, slot, r)); return ins
    oth = []
    for x in body:
        if x.kind == "M" and x.layer == 1 and x.pos < 52:
            tg = [v for v in x.name[0].values() if v[0] == 'X'][0]
            if tg[2] == 12 or tg[2][0] != 0: oth.append(rdx(tg[2], tg[3]))
    for _ in range(cfg.first_reads): L0.append(oth.pop(0))
    L0.append(Wait())
    nb = []
    for k, x in enumerate(body):
        nb.append(x)
        if isinstance(x, Wait) and x.layer == 1:
            extra = []
            if oth: extra.append(oth.pop(0))
            if x.pos == cfg.chk2 + 1:
                extra.append(Vv(f"v_cmp_gt_u32 vcc, 84, v{VPOLLD}", rd=[f"v{VPOLLD}"]))
            if x.pos == cfg.chk2 + 4:
                extra.append(R("s_cbranch_vccnz L_wait2\nL_ok2:"))
            for e in extra: e.layer, e.pos = x.layer, x.pos
            nb += extra
    body = nb
    if cfg.tstore: body = transpose_stores(body, cfg)
    full = S + L0 + body
    insert_waits(full)
    init = {f"s{SOWN}": ('s',1,0), f"s{SOWN12}": ('s',1,0), f"s{STS}": ('s',1,'S'), f"s{SSPEC}": ('s',1), f"v{VBIAS}": ('vb',1)}
    i0 = len(S) + len(L0)
    fix = R(""); fix.wr = regs('v', XS, 8); fix.name = ({}, ('XS', 1))
    check_tags(full[:i0] + [fix] + full[i0:], init)
    SPLIT = cfg.split
    segs = {}
    for x in body: segs.setdefault(min(x.layer + (1 if x.pos >= SPLIT else 0), cfg.nlayers), []).append(x)
    loop = [segs[k] for k in range(2, cfg.nlayers)]
    for sg in loop[1:]:
        assert len(sg) == len(loop[0]) and all(a.text == b.text and a.kind == b.kind for a, b in zip(sg, loop[0]))
    for tup in zip(*loop):
        if isinstance(tup[0], Wait):
            vm = [w.vmn for w in tup if w.vmn is not None]; lg = [w.lgn for w in tup if w.lgn is not None]
            for w in tup:
                w.vmn = min(vm) if vm else None; w.lgn = min(lg) if lg else None
    verify_waits(full)
    fin = segs[cfg.nlayers]
    errs = check_hazards(full)
    assert not errs, errs
    out = [f".globl {KN}\n.p2align 8\n.type {KN},@function\n{KN}:"]
    out += render(S) + render(L0) + render(segs[1])
    if cfg.loopalign: out.append(".p2align 6")
    out.append("L_loop:")
    if cfg.stamp:
        out.append(f"{TM} s[64:65]\ns_waitcnt lgkmcnt(0)\ns_sub_u32 s64, s64, s{T0R}\ns_sub_u32 m0, {nst[0]+3}, s{SCNT}\ns_nop 0\nv_writelane_b32 v0, s64, m0")
        nst[0] += 4
    out += render(loop[0])
    out.append(f"s_sub_u32 s{SCNT}, s{SCNT}, 1\ns_cbranch_scc0 L_loop")
    if cfg.stamp:
        t = []; stamp(t); out += render(t)
    fr = render(fin)
    if cfg.abl == 'nostore': fr = [t for t in fr if not t.startswith("global_store")]
    if cfg.abl == 'laststore':
        idx = [i for i, t in enumerate(fr) if t.startswith("global_store")][:-4]
        fr = [t for i, t in enumerate(fr) if i not in idx]
    if cfg.abl == 'quadstore':
        fr = [f"v_lshrrev_b32 v{VOUT}, 6, v{VL16}\nv_mul_u32_u24 v{VOUT}, 832, v{VOUT}\nv_and_b32 v{VOUT12}, 48, v{VL16}\nv_add_u32 v{VOUT}, v{VOUT}, v{VOUT12}\ns_mul_i32 s42, s16, 13312\ns_add_u32 s42, s42, 768\nv_add_u32 v{VOUT12}, s42, v{VOUT}\ns_mul_i32 s42, s16, 192\nv_add_u32 v{VOUT}, s42, v{VOUT}"] + fr
    out += fr
    if cfg.stamp:
        out.append("s_memtime s[66:67]\ns_waitcnt vmcnt(0)\ns_memtime s[68:69]\ns_memrealtime s[70:71]\ns_waitcnt lgkmcnt(0)")
        out.append("s_sub_u32 s66, s66, s60\ns_sub_u32 s68, s68, s60")
        out.append(f"v_writelane_b32 v0, s{S_TRY}, 0\nv_writelane_b32 v0, s66, 1\nv_writelane_b32 v0, s68, 2\nv_writelane_b32 v0, s62, 3\nv_writelane_b32 v0, s70, 4")
        out.append(f"s_lshl_b32 s42, s2, 2\ns_add_u32 s42, s42, s16\ns_lshl_b32 s42, s42, 7\ns_add_u32 s42, s42, {4<<20}")
        out.append(f"v_lshrrev_b32 v9, 2, v{VL16}\nv_add_u32 v9, s42, v9\ns_mov_b64 exec, 0xffffffff\nglobal_store_dword v9, v0, s[14:15]")
    out.append("s_endpgm")
    for t in sig_steps:
        out.append(f"L_sig{t}:\ns_mov_b64 exec, 1\nglobal_atomic_add v{BIAS}, v{BIAS+1}, s[12:13] sc1\ns_mov_b64 exec, -1\ns_branch L_sigret{t}")
    for k, cmp_ in ((1, f"v_cmp_gt_u32 vcc, 22, v{VPOLLD}"), (2, f"v_cmp_gt_u32 vcc, 84, v{VPOLLD}")):
        out.append(f"""L_wait{k}:
s_mov_b32 s{S_RET}, {k}
s_mov_b32 s{S_TRY}, {cfg.tries}
L_spin{k}:
s_sub_u32 s{S_TRY}, s{S_TRY}, 1
s_cbranch_scc1 L_self
s_sleep 8
global_load_dword v{VPOLLD}, v{VPOLL}, s[12:13] offset:{128*(k-1)} sc1
s_waitcnt vmcnt(0)
{cmp_}
s_nop 4
s_cbranch_vccnz L_spin{k}
s_branch L_ok{k}""")
    fb = [f"L_self:\ns_cmp_eq_u32 s{S_RET}, 1\ns_cbranch_scc0 L_self2"] + [f"v_accvgpr_write_b32 a{112+i}, v{TT+i}" for i in range(16)]
    fb += [f"L_self2:\ns_mov_b32 s{SRD_US+2}, {6*LAYER_B}\ns_mov_b32 s{SRD_UD+2}, {WOFF + 6*LAYER_B}\ns_mov_b32 s17, 0\nL_selfloop:", unit_addr(17)]
    fb += [unit_load(e, TT).text for e in range(8)] + ["s_waitcnt vmcnt(0)"]
    fb += [unit_perm(p, h, TT).text for h in range(2) for p in range(4)] + [unit_store(h, TT).text for h in range(2)]
    fb.append(f"s_waitcnt vmcnt(0)\ns_add_u32 s17, s17, 1\ns_cmp_lt_u32 s17, {NUNIT}\ns_cbranch_scc1 L_selfloop")
    fb.append(f"s_cmp_eq_u32 s{S_RET}, 1\ns_cbranch_scc0 L_ok2")
    fb += [f"v_accvgpr_read_b32 v{TT+i}, a{112+i}" for i in range(16)] + ["s_branch L_ok1"]
    out += fb
    out.append("L_end:\ns_endpgm")
    info.update(sig_t=sig_t, l0_last=lastg, x_issue=x_issue)
    return "\n".join(out), info

class C2(Cfg):
    stamp = False
    stamp_steps = tuple(range(1, 13))
    codepf = True
    xflag = ""
    stflag = " nt"
    split = 54
    loopalign = True
    seq = ['karg','b0','x0','x1','w0','sb','u','sa','cq','x2','w1','cu','rd0','x3','w2','x4','w3','us']
    pfa = (0, 5)
    wsplit = 2

    dma_pos = [1, 4, 7, 10, 13, 16, 19]
    x_pos = [21, 23]
    late = 22
    st_pos = [160,190,220,250,262,274,286,298,310]
    tstore = True
    ts_lag = 6
    stflags = None
    mul0 = True
    pk0 = True
    st2 = False
    abl = None
    bt_from = 8
    bl_from = 26 + 20
    lag_bl = 3
    def_from = 0
    sig_pos = 2
    dma_pos_x = [1, 4, 7, 10, 13, 16, 19]
    ns = 4
    sig_step = 3
    lag_x = 3
    lag_st = 3
    lag_poll = 2
    pf1_off = 16
    nB = 5
    codepf_share = True
    unit_step = 1
    unpack_from = 26*4
    poll_step = 6
    wl_from = 26*9 + 1
    wl_step = 4
    first_reads = 8
    chk2 = 40
    tries = 20000

HEAD = """; DCN-v2 cross network, 6 layers, B=16384, D=416, bf16 (written out by my own scheduling script)
; Kernarg: x0, ws, bs, out, debug, workspace
"""
def gen(cfg):
    mk, info = main_kernel(cfg)
    txt = HEAD + f"; @launch grid=(256,1,1) block=(256,1,1) lds={LDS_BYTES}\n"
    txt += '.amdgcn_target "amdgcn-amd-amdhsa--gfx950"\n.text\n' + mk + "\n"
    txt += '.section .rodata,"a"\n.p2align 6\n' + kd(KN, 512, 256)
    return txt, info

if __name__ == "__main__":
    cfg = C2()
    for a in sys.argv[2:]:
        k, v = a.split("=", 1); assert hasattr(cfg, k), k; setattr(cfg, k, eval(v))
    txt, info = gen(cfg)
    open(sys.argv[1], "w").write(txt)
    print(info, len(txt.splitlines()), "lines")
```

```python
import sys
from fast import *

KN = "standalone__dcn_v2_cross__recsys_kernel"
WOFF = 65536
L_RING = 53248
BLK = 6664
STG = 4*BLK
L_B0 = L_RING + 4*STG
LDS_BYTES = L_B0 + 1024
def slot(t): return (t + 3) % 4
AORD = [0, 6, 7, 1, 8, 2, 9, 3, 10, 4, 11, 5, 12]
NUNIT = 845

for u in range(1024): assert (u*24819) >> 22 == u // 169
for u in range(169): assert (u*5042) >> 16 == u // 13
for u in range(64): assert (u*21846) >> 16 == u // 3

VL16, VL16B, VLW, VTR, VTR12, VUS, VPOLL, VPOLLD = 2, 3, 251, 252, 253, 254, 255, 1
def WB(b, t): return b*32 + t*4
def XB(b, r): return 64 + b*20 + r*4
def ACC0(t, r):
    if t >= 6: return XS + 4*(t-6)
    j, h = t // 2, t % 2
    if h == 0: return XV(j, r)
    return [ACC(0), X12(0), HOLD(0)][j] + 4*r
VXE, VXO, VXEW, VXOW, VXOWN, VXD = BIAS+2, BIAS+3, VLW, VOUT, VOUT12, SPEC
VTRB, VTR12B = SPEC+1, SPEC+2
CQ = 68
BT_A0, BT_SC = SPEC+3, 163
CRAW = 100
S_XM0, S_RM0 = 46, 47
SRD_US, SRD_UD, S_US0, S_US1, S_UD0, S_UD1 = 48, 52, 56, 57, 58, 59
S_SEL0, S_SEL1, SRD_B, S_PC = 72, 73, 76, 80
S_RET, S_TRY, S_SIG = 74, 75, 82
S_OWNX, S_PAR = 84, 88

def kd(name, nv, acc, ns=102):
    return f""".amdhsa_kernel {name}
  .amdhsa_next_free_vgpr {nv}
  .amdhsa_next_free_sgpr {ns}
  .amdhsa_accum_offset {acc}
  .amdhsa_group_segment_fixed_size 0
  .amdhsa_kernarg_size 48
  .amdhsa_user_sgpr_count 2
  .amdhsa_user_sgpr_kernarg_segment_ptr 1
  .amdhsa_system_sgpr_workgroup_id_x 1
  .amdhsa_float_denorm_mode_32 3
.end_amdhsa_kernel
"""
def R(txt): return I(txt, "S")
def Vv(txt, rd=(), wr=()): return I(txt, "V", rd=rd, wr=wr)

def unit_addr(ureg):
    return (f"s_mul_i32 s42, s{ureg}, 24819\ns_lshr_b32 s42, s42, 22\n"
            f"s_mul_i32 s43, s42, 169\ns_sub_u32 s43, s{ureg}, s43\n"
            f"s_mul_i32 s44, s43, 5042\ns_lshr_b32 s44, s44, 16\n"
            f"s_mul_i32 s45, s44, 13\ns_sub_u32 s45, s43, s45\n"
            f"s_add_u32 s42, s42, 1\ns_mul_i32 s42, s42, {LAYER_B}\n"
            f"s_mul_i32 s{S_US0}, s44, 26624\ns_add_u32 s{S_US0}, s{S_US0}, s42\ns_lshl_b32 s43, s45, 6\ns_add_u32 s{S_US0}, s{S_US0}, s43\n"
            f"s_add_u32 s{S_US1}, s{S_US0}, 3328\n"
            f"s_mul_i32 s{S_UD0}, s45, 26624\ns_add_u32 s{S_UD0}, s{S_UD0}, s42\ns_lshl_b32 s43, s44, 10\ns_add_u32 s{S_UD0}, s{S_UD0}, s43\n"
            f"s_add_u32 s{S_UD0}, s{S_UD0}, {WOFF}\ns_add_u32 s{S_UD1}, s{S_UD0}, {TILE_B}")
def unit_load(e, base):
    return I(f"buffer_load_dword v{base+e}, v{VUS}, s[{SRD_US}:{SRD_US+3}], s{S_US0 if e < 4 else S_US1} offen offset:{(e%4)*832}", "B", wr=[f"v{base+e}"])
def unit_perm(p, h, base):
    return Vv(f"v_perm_b32 v{base+8+4*h+p}, v{base+2*p+1}, v{base+2*p}, s{S_SEL1 if h else S_SEL0}", rd=[f"v{base+2*p+1}", f"v{base+2*p}"], wr=[f"v{base+8+4*h+p}"])
def unit_store(h, base):
    return I(f"buffer_store_dwordx4 {rng('v',base+8+4*h,4)}, v{VL16}, s[{SRD_UD}:{SRD_UD+3}], s{S_UD1 if h else S_UD0} offen sc1", "T", rd=regs('v',base+8+4*h,4), wr=["Mw"])


VWS, VWS12 = VTR, VTR12
def transpose_stores(body, cfg):
    NL = cfg.nlayers
    key = lambda x: (x.layer - (NL-1))*NM + x.pos
    head = [x for x in body if key(x) < cfg.split]
    tail = [x for x in body if key(x) >= cfg.split]
    G = Gaps(NM + 200)
    mf = {}
    moved = []
    stores = []
    for x in tail:
        p = key(x)
        if x.kind == "M": mf[p] = x
        elif isinstance(x, Wait): pass
        elif x.kind == "T": stores.append((p, x))
        elif x.name and x.name[1] and x.name[1][0] == 'U' and (x.name[1][2] % 2 == 0 or x.name[1][2] == 1): moved.append((p, x))
        else: x.pos = p; G.g[p].append(x)
    fpos = {x.name[1][1:]: x.pos for g in G.g for x in g if x.name and x.name[1] and x.name[1][0] == 'F'}
    prev = None
    for txt in [f"v_bfe_u32 v{VLW}, v{VL16}, 5, 2", f"v_lshrrev_b32 v{VWS}, 8, v{VL16}", f"v_xor_b32 v{VLW}, v{VLW}, v{VWS}",
                f"v_and_b32 v{VWS}, 0xf0, v{VL16}", f"v_lshlrev_b32 v{VWS}, 2, v{VWS}", f"v_lshl_add_u32 v{VWS}, v{VLW}, 4, v{VWS}",
                f"s_add_u32 s42, s{S_XM0}, {L_X12}", f"v_add_u32 v{VWS12}, s42, v{VWS}", f"s_mul_i32 s42, s16, {GSTR}", f"v_add_u32 v{VWS}, s42, v{VWS}",
                f"v_bfe_u32 v{VLW}, v{VL16}, 7, 2", f"v_bfe_u32 v{VOUT}, v{VL16}, 4, 2", f"v_xor_b32 v{VLW}, v{VLW}, v{VOUT}",
                f"v_lshrrev_b32 v{VOUT}, 6, v{VL16}", f"v_mul_u32_u24 v{VOUT}, 832, v{VOUT}", f"v_lshl_add_u32 v{VOUT}, v{VLW}, 4, v{VOUT}",
                f"s_mul_i32 s42, s16, 13312", f"s_add_u32 s42, s42, 768", f"v_add_u32 v{VOUT12}, s42, v{VOUT}", f"s_mul_i32 s42, s16, 192", f"v_add_u32 v{VOUT}, s42, v{VOUT}"]:
        prev = G.place(Vv(txt) if txt[0] == 'v' else R(txt), cfg.split + 4 if prev is None else prev.pos + 1)
    free = {}; lastdef = 0
    for p, x in stores: G.g[p].append(I('', 'X'))
    for n, (p, x) in enumerate(stores):
        d = int(x.rd[0][1:]); shared = d == TT + 12
        assert p > prev.pos
        if shared: wa, ra = f"v{VWS12}", f"v{VS}"; wo = ""
        else:
            j = int(x.text.split("offset:")[1].split()[0]) // 64; r = (d - HOLD(0)) // 4
            wa, wo, ra = f"v{VWS}", f" offset:{(j*4+r)*1024}", f"v{VRD[0]} offset:{(j*4+r)*1024}"
        w = I(f"ds_write_b128 {wa}, {rng('v',d,4)}{wo}", "X", rd=x.rd); w.name = x.name; w.pos = p; G.g[p] = [y for y in G.g[p] if y.text] + [w]
        if cfg.st_pos and n < len(cfg.st_pos) and cfg.st_pos[n]:
            src = x.rd; t_ = SPEC
            x.text = x.text.replace(rng('v',d,4), rng('v',t_,4)); x.rd = regs('v',t_,4)
            rd = I(f"ds_read_b128 {rng('v',t_,4)}, {ra}", "D", wr=x.rd); rd.name = ({}, ('TR', n))
            G.place(rd, max(p + 1, cfg.st_pos[n] - cfg.ts_lag, lastdef + 1))
            x.name = ({q: ('TR', n) for q in x.rd}, None)
            G.place(x, rd.pos + cfg.ts_lag); lastdef = x.pos
            for q in src: free.setdefault(q, []).append((p, p))
            continue
        rd = I(f"ds_read_b128 {rng('v',d,4)}, {ra}", "D", wr=x.rd); rd.name = ({}, ('TR', n))
        G.place(rd, p + 1)
        x.name = ({q: ('TR', n) for q in x.rd}, None)
        fl = cfg.stflags[min(n, len(cfg.stflags)-1)] if cfg.stflags else None
        if fl is not None: x.text = x.text.replace(cfg.stflag, fl)
        G.place(x, rd.pos + cfg.ts_lag)
        for q in x.rd: free.setdefault(q, []).append((p, x.pos))
    for p, x in moved:
        tg = x.name[1]; dl = fpos[tg[1:]] - 1
        e = max([p] + [b + 1 for a, b in free.get(x.wr[0], []) if a < dl])
        G.place(x, e, dl)
    out = []
    for p in range(cfg.split, G.n):
        lst = G.ordered(p)
        if p in mf: out.append(mf[p])
        if p in mf or lst:
            w = Wait(); out.append(w); out += lst
            for y in [w] + lst: y.layer, y.pos = NL - 1 + p // NM, p % NM
    return head + out

def main_kernel(cfg):
    mf, G, items, info = build_schedule(cfg)
    pre, body = unroll(mf, G, cfg, 1)
    S = []
    A = lambda t: S.append(R(t))
    nst = [5]
    TM, T0R = ("s_memrealtime", 62) if cfg.stamp == 'rt' else ("s_memtime", 60)
    def stamp(lst=None):
        if not cfg.stamp: return
        t = R(f"{TM} s[64:65]\ns_waitcnt lgkmcnt(0)\ns_sub_u32 s64, s64, s{T0R}\nv_writelane_b32 v0, s64, {nst[0]}")
        nst[0] += 1
        (S if lst is None else lst).append(t)
    if cfg.stamp: A(f"s_memtime s[60:61]\ns_memrealtime s[62:63]\ns_mov_b32 s{S_TRY}, 0")
    if cfg.diag: A(f"s_memrealtime s[62:63]\ns_mov_b32 s{S_TRY}, {cfg.tries}\ns_mov_b32 s90, 0")
    A("s_cmp_ge_u32 s2, 256\ns_cbranch_scc1 L_end")
    A("s_load_dwordx8 s[4:11], s[0:1], 0\ns_load_dwordx4 s[12:15], s[0:1], 32")
    if cfg.codepf:
        A(f"s_getpc_b64 s[{S_PC}:{S_PC+1}]\nL_pc:")
        if cfg.codepf_share:
            A("s_lshr_b32 s42, s2, 3\ns_and_b32 s42, s42, 31\nv_and_b32 v4, 0xe0, v0\nv_add_u32 v4, s42, v4\nv_lshlrev_b32 v4, 7, v4")
        else: A("v_lshlrev_b32 v4, 7, v0")
        A("v_min_u32 v4, L_end-L_pc, v4")
        S.append(I(f"global_load_dword v{VPFD}, v4, s[{S_PC}:{S_PC+1}]", "G", wr=[f"v{VPFD}"]))
    A("v_lshrrev_b32 v1, 6, v0\nv_and_b32 v0, 63, v0\ns_nop 0\nv_readfirstlane_b32 s16, v1")
    A(f"v_lshlrev_b32 v{VL16}, 4, v0\nv_add_u32 v{VL16B}, 4096, v{VL16}")
    A("v_and_b32 v5, 15, v0\nv_lshrrev_b32 v6, 4, v0\nv_lshlrev_b32 v1, 4, v6\nv_bfe_u32 v8, v0, 2, 2\nv_and_b32 v12, 48, v2")
    A(f"s_mul_i32 s43, s16, 13312\nv_lshrrev_b32 v9, 3, v0\nv_mul_u32_u24 v9, 1664, v9\nv_and_b32 v10, 32, v0\nv_and_b32 v11, 0x70, v{VL16}\nv_xor_b32 v10, v11, v10\nv_add3_u32 v{VXD}, v9, v10, s43")
    A("s_mul_i32 s42, s16, 3\nv_add_u32 v13, s42, v6\nv_cmp_eq_u32 vcc, 3, v6\nv_mov_b32 v14, 12\nv_lshlrev_b32 v15, 2, v5\nv_cndmask_b32 v13, v13, v14, vcc\nv_lshl_add_u32 v14, v13, 6, v15")
    A(f"s_lshl_b32 s96, s16, 8\ns_add_u32 s96, s96, {L_B0}")
    A(f"s_lshl_b32 s{S_XM0}, s16, 10\ns_mul_i32 s{S_RM0}, s16, {BLK}\ns_add_u32 s{S_RM0}, s{S_RM0}, {L_RING}")
    A("s_mul_i32 s31, s2, 53248\ns_mul_i32 s83, s16, 6656")
    def setup_pf():
      A(f"s_lshr_b32 s44, s2, 3\ns_and_b32 s44, s44, 31\ns_lshl_b32 s44, s44, 2\ns_add_u32 s44, s44, s16")
      A(f"v_lshrrev_b32 v{VPF}, 4, v{VL16}\nv_mul_u32_u24 v{VPF}, 21846, v{VPF}\nv_lshrrev_b32 v{VPF}, 16, v{VPF}\nv_lshl_add_u32 v{VPF}, v{VPF}, 7, s44\nv_min_u32 v{VPF}, 2703, v{VPF}\nv_lshlrev_b32 v{VPF}, 7, v{VPF}")
    early_pf = any(e.startswith('pf') for e in cfg.seq)
    if early_pf: setup_pf()
    sigsetup = R('')
    def setup_a():
        A("s_mul_i32 s42, s16, 192")
        A(f"v_mul_u32_u24 v10, {BLK}, v6\nv_mul_u32_u24 v11, 832, v8\nv_add3_u32 v10, v10, v11, v12")
        A(f"s_add_u32 s42, s42, {L_RING}\nv_add_u32 v{VTR}, s42, v10\nv_add_u32 v{VTR12}, {L_RING+768}, v10")
        A(f"v_add_u32 v{VTRB}, {2*STG}, v{VTR}\nv_add_u32 v{VTR12B}, {2*STG}, v{VTR12}")
        A(f"v_lshlrev_b32 v34, 2, v5\nv_and_b32 v34, 32, v34\nv_xor_b32 v34, v34, v1\nv_lshl_add_u32 v34, v5, 6, v34\nv_and_b32 v35, 1, v5")
        A(f"v_mul_u32_u24 v36, 24576, v35\nv_add_u32 v{VXE}, v34, v36\nv_xor_b32 v34, 64, v34\nv_mul_u32_u24 v36, 28672, v35\nv_add_u32 v{VXO}, v34, v36")
        A(f"v_add_u32 v{VXEW}, s{S_XM0}, v{VXE}\nv_add_u32 v{VXOW}, s{S_XM0}, v{VXO}")
        A(f"v_add_u32 v{VBIAS}, s96, v1\ns_mov_b32 s{SMASK}, 0xffff0000")
    def setup_b():
        A(f"v_mul_u32_u24 v{VUS}, 6656, v6\nv_lshl_add_u32 v{VUS}, v5, 2, v{VUS}")
        A(f"s_lshl_b32 s17, s2, 2\ns_add_u32 s17, s17, s16")
        A(unit_addr(17))
        A(f"s_cmp_lt_u32 s17, {NUNIT}\ns_cselect_b32 s{SRD_US+2}, {6*LAYER_B}, 0\ns_cselect_b32 s{SRD_UD+2}, {WOFF + 6*LAYER_B}, 0")
        A(f"s_mov_b32 s{SRD_US+3}, 0x20000\ns_mov_b32 s{SRD_UD+3}, 0x20000\ns_mov_b32 s{S_SEL0}, 0x05040100\ns_mov_b32 s{S_SEL1}, 0x07060302")
    def setup_c():
        A(f"s_mul_i32 s97, s16, 3\ns_mul_i32 s99, s16, {GSTR}\ns_add_u32 s99, s99, {L_BIAS}\ns_lshr_b32 s98, s16, 1\ns_lshl_b32 s98, s98, 6")
        S.append(sigsetup)
        if not early_pf: setup_pf()
        for d in range(4):
            A(f"s_add_u32 s42, s16, {d}\ns_and_b32 s42, s42, 3\ns_mul_i32 s44, s42, 3072\ns_lshl_b32 s43, s44, 2")
            A(f"v_add_u32 v{VRD[d]}, s43, v{VL16}\nv_add_u32 v{VW[d]}, s44, v{VL16}")
        A(f"v_add_u32 v{VRD12}, {L_X12}, v{VL16}\nv_add_u32 v{VS}, s{S_XM0}, v{VRD12}")
        A(f"s_mov_b32 s{SCNT}, {cfg.nlayers-3}\nv_and_b32 v{VPOLL}, 16, v{VL16}\nv_lshlrev_b32 v{VPOLL}, 2, v{VPOLL}")
        for j in range(3):
            A(f"s_add_u32 s42, s97, {j}\ns_lshr_b32 s42, s42, 1\ns_lshl_b32 s{S_OWNX+j}, s42, 12")
        A(f"s_bitcmp1_b32 s16, 0\ns_cselect_b64 s[{S_PAR}:{S_PAR+1}], -1, 0")
    def setup_p():
        A(f"s_add_u32 s{SPF}, s14, {WOFF + LAYER_B}\ns_addc_u32 s{SPF+1}, s15, 0")
        A(f"s_mul_i32 s42, s16, {6*TILE_B}\ns_add_u32 s{SOWN}, s{SPF}, s42\ns_addc_u32 s{SOWN+1}, s{SPF+1}, 0")
        A(f"s_sub_u32 s{SOWN12}, s{SOWN}, {L_X12-12288}\ns_subb_u32 s{SOWN12+1}, s{SOWN+1}, 0")
        A(f"s_lshr_b32 s42, s16, 1\ns_add_u32 s42, s42, 24\ns_mul_i32 s42, s42, {TILE_B}")
        A(f"s_add_u32 s{STS}, s{SPF}, s42\ns_addc_u32 s{STS+1}, s{SPF+1}, 0\ns_add_u32 s{SSPEC}, s42, {12288 + LAYER_B + WOFF - L_X12}")
        A(f"s_mov_b32 s{SRD}, s14\ns_mov_b32 s{SRD+1}, s15\ns_mov_b32 s{SRD+3}, 0x20000")
        A(f"s_and_b32 s42, s16, 1\ns_cmp_eq_u32 s42, 0\ns_cselect_b32 s{SRD+2}, {WOFF + 6*LAYER_B}, 0")
        for r in range(4):
            A(f"s_add_u32 s42, s31, {r*13312}\ns_add_u32 s{SOUT(r)}, s10, s42\ns_addc_u32 s{SOUT(r)+1}, s11, 0")
    def do_karg():
        A("s_waitcnt lgkmcnt(0)")
        stamp()
        A(f"s_mov_b32 s{SRD_US}, s6\ns_mov_b32 s{SRD_US+1}, s7")
        A("s_add_u32 s4, s4, s31\ns_addc_u32 s5, s5, 0")
        A("s_add_u32 s6, s6, s83\ns_addc_u32 s7, s7, 0")
    def do_cq():
        S.append(Wait())
        for u in range(4):
            S.append(I(f"ds_read_b128 {rng('v',CRAW+4*u,4)}, v{VBIAS} offset:{u*64}", "D", rd=["Lb0"], wr=regs('v',CRAW+4*u,4)))
    def do_cu():
        for u in range(4):
            S.append(Wait())
            for q in range(4):
                S.append(Vv(f"v_lshlrev_b32 v{CQ+8*u+2*q}, 16, v{CRAW+4*u+q}", rd=[f"v{CRAW+4*u+q}"], wr=[f"v{CQ+8*u+2*q}"]))
                S.append(Vv(f"v_and_b32 v{CQ+8*u+2*q+1}, s{SMASK}, v{CRAW+4*u+q}", rd=[f"v{CRAW+4*u+q}"], wr=[f"v{CQ+8*u+2*q+1}"]))
            if cfg.mul0:
                for q in range(4):
                    a = CQ+8*u+2*q
                    S.append(Vv(f"v_pk_add_f32 v[{a}:{a+1}], v[{a}:{a+1}], 1.0 op_sel_hi:[1,0]", rd=[f"v{a}", f"v{a+1}"], wr=[f"v{a}", f"v{a+1}"]))
    def xdma(s):
        o = AORD[s]*128
        return [R(f"s_add_u32 m0, s{S_XM0}, {AORD[s]*4096 - o}"),
                I(f"global_load_lds_dwordx4 v{VXD}, s[4:5] offset:{o}{cfg.xflag}", "G", wr=[f"Lxc{s}"])]
    def wdma(t, i):
        v = VL16 if i < 4 else VL16B
        txt = f"global_load_lds_dwordx4 v{v}, s[6:7] offset:{(i%4)*1024}"
        if i == 6: txt = "s_mov_b64 exec, 0xffffffff\n" + txt + "\ns_mov_b64 exec, -1"
        return I(txt, "G", wr=[f"Lw{t}"])
    def wm0(t, i): return R(f"s_add_u32 m0, s{S_RM0}, {slot(t)*STG + (4096 if i >= 4 else 0)}")
    def wadv(t):
        x = "s_add_u32 s6, s6, 26624\ns_addc_u32 s7, s7, 0"
        return R(x)
    def pro_x(s):
        a, b = xdma(s); S.extend([a, R("s_nop 0"), b])
    def pro_w(t, lo=0, hi=7):
        for i in range(lo, hi):
            if i in (lo, 4): S.extend([wm0(t, i), R("s_nop 0")])
            S.append(wdma(t, i))
        if hi == 7: S.append(wadv(t))
    def pf_w0(lo, hi):
        m = ((1 << min(3*hi, 64)) - 1) ^ ((1 << 3*lo) - 1)
        txt = f"global_load_dword v{VPFD}, v{VPF}, s[{SRD_US}:{SRD_US+1}]"
        if m != (1 << 64) - 1:
            txt = f"s_mov_b32 exec_lo, {hex(m & 0xffffffff)}\ns_mov_b32 exec_hi, {hex(m >> 32)}\n{txt}\ns_mov_b64 exec, -1"
        return I(txt, "G", wr=[f"v{VPFD}"])
    def pro_seq(seq):
        for e in seq:
            if e == 'pf': S.append(pf_w0(0, 22))
            elif e == 'pfa': S.append(pf_w0(*cfg.pfa))
            elif e == 'pfb': S.append(pf_w0(cfg.pfa[1], 22))
            elif e == 'u':
                A(f"s_mov_b32 s{SRD_UD}, s14\ns_mov_b32 s{SRD_UD+1}, s15")
                for k in range(8): S.append(unit_load(k, TT))
            elif e == 'us':
                S.append(Wait())
                S.extend([unit_perm(p, h, TT) for h in range(2) for p in range(4)] + [unit_store(h, TT) for h in range(2)])
            elif e == 'b0':
                A("s_mov_b32 m0, s96\ns_nop 0")
                S.append(I("global_load_lds_dword v14, s[8:9]", "G", wr=["Lb0"]))
            elif e == 'tw':
                A(f"v_and_b32 v15, 16, v{VL16}\nv_mul_u32_u24 v15, {(3<<20)//16}, v15")
                S.append(I(f"global_load_dword v{VPFD}, v15, s[14:15]", "G", wr=[f"v{VPFD}"]))
            elif e == 'to':
                A(f"v_mov_b32 v15, s31")
                S.append(I(f"global_load_dword v{VPFD}, v15, s[10:11]", "G", wr=[f"v{VPFD}"]))
            elif e[0] == 'x': pro_x(int(e[1:]))
            elif e[0] == 'w' and e[-1] == 'a': pro_w(int(e[1:-1]), 0, cfg.wsplit)
            elif e[0] == 'w' and e[-1] == 'b': pro_w(int(e[1:-1]), cfg.wsplit, 7)
            elif e[0] == 'w': pro_w(int(e[1:]))
            else: raise ValueError(e)
    def reads(t):
        b, sl = t % 2, slot(t)
        out = []
        def xr(r):
            d = XB(b, r)
            if r == 4: txt = f"v{VXOW if t % 2 else VXEW} offset:{(t//2)*4096}"
            else: txt = f"v{VXO if t % 2 else VXE} offset:{(t//2)*4096 + r*1024}"
            ins = I(f"ds_read_b128 {rng('a',d,4)}, {txt}", "D", rd=[txt.split()[0]], wr=regs('a',d,4)); ins.name = ({}, ('x0', t, r)); return ins
        def wr_(tt, p):
            d = WB(b, tt) + 2*p
            if tt >= 6: txt = f"v{VTR12B if sl >= 2 else VTR12} offset:{(sl%2)*STG + p*3328 + 8*(tt-6)}"
            else: txt = f"v{VTRB if sl >= 2 else VTR} offset:{(sl%2)*STG + p*3328 + (tt//2)*64 + 8*(tt%2)}"
            ins = I(f"ds_read_b64_tr_b16 {rng('a',d,2)}, {txt}", "D", wr=regs('a',d,2)); ins.name = ({}, ('w0', t, tt)); return ins
        out += [xr(4), wr_(6,0), wr_(6,1), wr_(7,0), wr_(7,1), wr_(0,0), wr_(0,1), xr(0), xr(1), xr(2), xr(3)]
        for tt in range(1, 6): out += [wr_(tt, 0), wr_(tt, 1)]
        return out
    def bar(t, extra=()):
        need = [f"Lw{t+1}"] + [f"Lxc{i}" for i in range(min(t+2, 12) + 1)] if t < 12 else []
        if t >= 0: need += [r for x in reads(t) for r in x.wr]
        return I("s_barrier", "BAR", rd=need + list(extra))
    for e in cfg.seq:
        if e in ('sa', 'sb', 'sc', 'sp'): dict(sa=setup_a, sb=setup_b, sc=setup_c, sp=setup_p)[e]()
        elif e == 'karg': do_karg()
        elif e == 'cq': do_cq()
        elif e == 'cu': do_cu()
        elif e.startswith('wait:'):
            S.append(Wait()); S.append(I("s_nop 0", "S", rd=[e[5:]])); stamp()
        elif e == 'st': stamp()
        elif e == 'rd0':
            S.append(Wait()); S.append(bar(-1)); stamp(); S.extend(reads(0))
        else: pro_seq([e])
    S.append(Wait()); S.append(bar(0))
    stamp()

    deferred = []
    for e in ('sc', 'sp'):
        if e not in cfg.seq:
            n0 = len(S); dict(sc=setup_c, sp=setup_p)[e](); deferred += S[n0:]; del S[n0:]
    N0 = 338
    NS = cfg.ns
    G0 = Gaps(N0 + 400)
    slot1 = {}
    M0 = []
    order = [(6, 4), (7, 4)]
    for tt in range(6): order += [(tt, r) for r in ([0,1,2,3] if tt % 2 == 0 else [3,2,1,0])]
    acc_done = {}
    for t in range(13):
        b = t % 2
        for (tt, r) in order:
            a = ACC0(tt, r); c = (CQ + 4*tt) if t == 0 else a
            ins = I(f"v_mfma_f32_16x16x32_bf16 {rng('v',a,4)}, {rng('a',WB(b,tt),4)}, {rng('a',XB(b,r),4)}, {rng('v',c,4)}", "M",
                    rd=regs('a',WB(b,tt),4)+regs('a',XB(b,r),4), wr=regs('v',a,4), srcc=regs('v',c,4))
            exp = {x: ('w0', t, tt) for x in regs('a',WB(b,tt),4)}; exp.update({x: ('x0', t, r) for x in regs('a',XB(b,r),4)})
            if t: exp.update({x: ('a0', tt, r) for x in regs('v',a,4)})
            ins.name = (exp, ('a0', tt, r))
            acc_done[(tt, r)] = len(M0)
            M0.append(ins)
    def put(ins, p, latest=None, after=()): return G0.place(ins, p, latest, after)
    def put1(ins, p):
        assert p not in slot1 and p % 26 != 25, p
        slot1[p] = ins; ins.pos = p
    def puts(ins, p, latest=None):
        lines = ins.text.split("\n")
        while any((p+i) in slot1 or (p+i) % 26 == 25 for i in range(len(lines))): p += 1
        for i, t in enumerate(lines):
            x = ins if i == len(lines) - 1 else R(t)
            x.text = t; put1(x, p + i)
        assert latest is None or ins.pos <= latest, (ins.text, ins.pos, latest)
        return ins
    wl = [x for x in pre if x.tag.cls in ('wload', 'wupd')]
    rest = [x for x in pre if x.tag.cls not in ('wload', 'wupd')]
    xq = [s for s in range(13) if f"x{s}" not in cfg.seq]
    x_issue = {s: -1 for s in range(13) if s not in xq}
    bars = {}; advs = []; xadvs = []
    for t in range(13):
        g0 = 26*t
        if t < 12:
            bars[t+1] = put(bar(t+1), g0 + 25, g0 + 25)
            rp = [q for q in range(25) if not (t + NS <= 12 and q == (cfg.dma_pos_x if xq else cfg.dma_pos)[6])]
            for i, x in enumerate(reads(t+1)): put(x, g0 + rp[i], g0 + rp[i])
        ev = []
        dp = cfg.dma_pos_x if xq else cfg.dma_pos
        if t + NS <= 12:
            ev += [(p, wm0(t+NS, i), wdma(t+NS, i), i) for i, p in enumerate(dp)]
            advs.append((g0, dp[6]))
        for p in cfg.x_pos:
            if xq:
                s = xq.pop(0); a, bb = xdma(s); ev.append((p, a, bb, None)); x_issue[s] = t
                assert s >= t + 3
                xadvs.append((g0 + p, s))
        cur = None; lastp = -2
        for p, m, ins, i in sorted(ev, key=lambda e: e[0]):
            if m.text != cur:
                assert p - 1 > lastp, (t, p)
                put1(m, g0 + p - 1); cur = m.text
            if i == 6:
                a, bb, c = ins.text.split("\n"); put1(R(a), g0 + p); ins.text = bb + "\n" + c
            put(ins, g0 + p, g0 + p); lastp = p
    assert not xq
    def put_adv(ins, p, latest):
        ln = ins.text.split("\n")
        for i in range(0, len(ln), 2):
            x = puts(R(ln[i] + "\n" + ln[i+1]), p, latest); p = x.pos + 1
    for g0, dl in advs: put_adv(wadv(g0 // 26 + NS), g0 + dl + 1, g0 + 26)
    g = 26*cfg.unit_step
    tt_free = 0
    if 'us' in cfg.seq: sig_t = cfg.sig_step
    else:
        bars[cfg.unit_step].rd += regs('v', TT, 8)
        pm = [put(unit_perm(p, h, TT), g) for h in range(2) for p in range(4)]
        st = [put(unit_store(h, TT), g + cfg.late, after=[(x, 1) for x in pm]) for h in range(2)]
        sig_t = st[1].pos // 26 + cfg.lag_st; tt_free = st[1].pos + 2
    bars[sig_t].rd.append("Mw")
    sig_steps = list(range(sig_t, min(sig_t + cfg.nB, 11) + 1))
    for t in sig_steps:
        x = puts(R(f"s_cmp_eq_u32 s{S_SIG}, {t}\ns_cbranch_scc1 L_sig{t}"), 26*t + cfg.sig_pos, 26*t + 24)
        x.text += f"\nL_sigret{t}:"
    nb_ = len(sig_steps) - 1
    sigsetup.text = (f"s_lshr_b32 s42, s2, 1\ns_mul_i32 s43, s42, {65536 // nb_ + 1}\ns_lshr_b32 s43, s43, 16\ns_mul_i32 s43, s43, {nb_}\ns_sub_u32 s42, s42, s43\ns_add_u32 s42, s42, {sig_t + 1}\n"
                     f"s_cmp_lt_u32 s2, 44\ns_cselect_b32 s42, {sig_t}, s42\ns_cselect_b32 s43, 0, 128\n"
                     f"s_cmp_lt_u32 s2, 212\ns_cselect_b32 s42, s42, 255\ns_cmp_eq_u32 s16, 0\ns_cselect_b32 s{S_SIG}, s42, 255\n"
                     f"s_and_b32 s42, s2, 1\ns_lshl_b32 s42, s42, 6\ns_add_u32 s42, s42, s43\nv_mov_b32 v{BIAS}, s42\nv_mov_b32 v{BIAS+1}, 1")
    assert all((u*(65536 // nb_ + 1)) >> 16 == u // nb_ for u in range(128))
    lines = [l for x in deferred for l in x.text.split("\n") if l]
    groups = []
    for l in lines:
        if l.startswith(("s_addc", "s_subb", "s_cselect")): groups[-1].append(l)
        else: groups.append([l])
    p = cfg.def_from; defpos = {}
    for gr in groups:
        if gr[0].startswith("v_"): x = put(Vv(gr[0]), p)
        else: x = puts(R("\n".join(gr)), p)
        for l in gr: defpos[l.split()[1].rstrip(",")] = x.pos
        p = x.pos + (0 if not gr[0].startswith("v_") and False else 1)
    if groups:
        assert defpos[f"v{BIAS+1}"] < 26*sig_steps[0] + cfg.sig_pos and defpos["s98"] < cfg.bt_from
        assert defpos[f'v{VPOLL}'] < 26*cfg.poll_step + cfg.late and p < 26*(cfg.poll_step + cfg.lag_poll), p
    pl = put(I(f"global_load_dword v{VPOLLD}, v{VPOLL}, s[12:13] sc1", "G", wr=[f"v{VPOLLD}"]), 26*cfg.poll_step + cfg.late)
    bars[cfg.poll_step + cfg.lag_poll].rd.append(f"v{VPOLLD}")
    ck = 26*(cfg.poll_step + cfg.lag_poll)
    c1 = put(Vv(f"v_cmp_gt_u32 vcc, 22, v{VPOLLD}", rd=[f"v{VPOLLD}"]), ck)
    br = puts(R("s_cbranch_vccnz L_wait1"), c1.pos + 2); br.text += "\nL_ok1:"
    pf1 = put(I(f"global_load_dword v{VPFD}, v{VPF}, s[{SPF}:{SPF+1}]{cfg.ldflag}", "G", wr=[f"v{VPFD}"]), max(br.pos, ck + cfg.pf1_off))
    puts(R(f"s_add_u32 s{SPF}, s{SPF}, {LAYER_B}\ns_addc_u32 s{SPF+1}, s{SPF+1}, 0"), pf1.pos + 1)
    p = max(cfg.wl_from, pf1.pos + 1); prev = None
    for x in wl:
        if x.vm:
            prev = put(x, max(p if prev is None else prev.pos + cfg.wl_step, 26*12 + 4 if x.kind == 'B' else 0), after=[(lastu, 0)] if prev is not None and lastu else [])
            lastu = None
        else:
            lastu = puts(x, prev.pos + 1)
    T0, T1, T2 = 160, 161, 162
    x = None
    for txt in [f"v_bfe_u32 v{T0}, v{VL16}, 6, 2", f"v_cmp_eq_u32 vcc, 3, v{T0}", f"v_add_u32 v{T1}, s97, v{T0}", f"v_mov_b32 v{T2}, 12",
                f"v_cndmask_b32 v{T1}, v{T1}, v{T2}, vcc", f"v_mov_b32 v{T2}, 0.5", f"v_cndmask_b32 v{BT_SC}, 1.0, v{T2}, vcc",
                f"v_mov_b32 v{T2}, s98", f"v_cndmask_b32 v{T2}, 0, v{T2}, vcc",
                f"v_lshl_add_u32 v{T2}, v{T0}, 7, v{T2}", f"v_and_b32 v{T0}, 48, v{VL16}", f"v_lshl_add_u32 v{T1}, v{T1}, 6, v{T0}",
                f"v_add3_u32 v{T2}, v{T2}, v{T0}, s99", f"v_lshrrev_b32 v{T0}, 8, v{VL16}", f"v_lshl_add_u32 v{BT_A0}, v{T0}, 9, v{T2}",
                f"v_mul_u32_u24 v{T0}, 832, v{T0}", f"v_add_u32 v{T0}, v{T0}, v{T1}"]:
        x = put(Vv(txt), cfg.bt_from if x is None else x.pos + 1)
    bl = [put(I(f"global_load_dwordx4 {rng('v',TT+8*rd+4,4)}, v{T0}, s[8:9] offset:{1664*rd}", "G", wr=regs('v',TT+8*rd+4,4)), max(x.pos + 1 + rd, tt_free, cfg.bl_from)) for rd in range(2)]
    tb = bl[1].pos // 26 + cfg.lag_bl
    bars[tb].rd += regs('v', TT+4, 4) + regs('v', TT+12, 4)
    u_ = []
    for rd in range(2):
        for q in range(4):
            lo, hi = TT+8*rd+q, TT+8*rd+4+q
            x = put(Vv(f"v_lshlrev_b32 v{lo}, 16, v{hi}", rd=[f"v{hi}"], wr=[f"v{lo}"]), 26*tb)
            y = put(Vv(f"v_and_b32 v{hi}, s{SMASK}, v{hi}", rd=[f"v{hi}"], wr=[f"v{hi}"]), x.pos)
            u_ += [put(Vv(f"v_mul_f32 v{r_}, v{BT_SC}, v{r_}", rd=[f"v{r_}"], wr=[f"v{r_}"]), y.pos) for r_ in (lo, hi)]
    x = None
    for h in range(2):
        for rd in range(2):
            x = put(I(f"ds_write_b128 v{BT_A0}, {rng('v',TT+8*rd+4*h,4)} offset:{1024*rd}", "X", rd=regs('v',TT+8*rd+4*h,4)), max(26*11, 0 if x is None else x.pos + 1), after=[(y, 1) for y in u_])
        if h == 0: x = put(Vv(f"v_xor_b32 v{BT_A0}, 64, v{BT_A0}"), x.pos + 1)
    y = put(Vv(f"v_and_b32 v{VBIAS}, 48, v{VBIAS}"), 26*2)
    put(Vv(f"v_add3_u32 v{VBIAS}, v{VBIAS}, s99, v{T0}"), put(Vv(f"v_mov_b32 v{T0}, 512"), max(y.pos, bl[1].pos + 1)).pos + 1)
    bt_last = x; bt_valu = max(y.pos for y in u_)
    assert bt_valu < c1.pos
    ux = []
    for j in range(3):
        for r in range(4):
            ux.append((10 + j, X0F(j, r, 0), f"v{VXOWN} offset:{r*1024}"))
    ux.append((12, X0S, f"v{VXEW} offset:24576"))
    prev = None; rds = []; unp = {}
    for (s, d, adr) in ux:
        tb = max(x_issue[s] + cfg.lag_x, 1)
        if f"Lxc{s}" not in bars[tb].rd: bars[tb].rd.append(f"Lxc{s}")
        e = max(26*tb, cfg.unpack_from, bt_valu + 1 if d == X0F(2, 3, 0) else 0)
        if len(rds) % 4 == 0 and len(rds) < 12:
            j = len(rds) // 4
            a_, b_ = (VXE, VXO) if j % 2 == 0 else (VXO, VXE)
            prev = put(Vv(f"v_cndmask_b32 v{VXOWN}, v{a_}, v{b_}, s[{S_PAR}:{S_PAR+1}]", wr=[f"v{VXOWN}"]), e - 4 if prev is None else prev.pos)
            prev = put(Vv(f"v_add_u32 v{VXOWN}, s{S_OWNX+j}, v{VXOWN}", wr=[f"v{VXOWN}"]), prev.pos)
            assert prev.pos > defpos.get(f"s[{S_PAR}:{S_PAR+1}]", 0) + 1
        rd = put(I(f"ds_read_b128 {rng('v',d+4,4)}, {adr}", "D", rd=[adr.split()[0]], wr=regs('v',d+4,4)), e, 26*12 - 2, after=[(prev, 1)] if prev else [])
        prev = rd; rds.append((rd, d)); bars[12].rd += regs('v', d+4, 4)
    for rd, d in rds:
        last = None
        for q in range(4):
            for h in range(2):
                txt = f"v_lshlrev_b32 v{d+2*q}, 16, v{d+4+q}" if h == 0 else f"v_and_b32 v{d+2*q+1}, s{SMASK}, v{d+4+q}"
                nb = rd.pos + 8
                last = put(Vv(txt, rd=[f"v{d+4+q}"], wr=[f"v{d+2*q+h}"]), nb, after=[(last, 0)] if last else [])
                unp[d] = last
    wr = []
    def ep(D0, D1, x0, e0, dst, adr, tag):
        f = []
        for e in range(8):
            a = (D0 + e) if e < 4 else (D1 + e - 4)
            if cfg.mul0:
                ee = max(e0[e // 4] + 3, unp[x0].pos + 1)
                probe = Vv("x"); q = ee
                while not G0.fits(q, probe): q += 1
                if cfg.pk0 and e % 2 == 0 and q >= N0:
                    f.append(put(Vv(f"v_pk_mul_f32 v[{a}:{a+1}], v[{x0+e}:{x0+e+1}], v[{a}:{a+1}]", rd=[f"v{a}", f"v{a+1}", f"v{x0+e}", f"v{x0+e+1}"], wr=[f"v{a}", f"v{a+1}"]), ee)); skip = True
                elif e % 2 == 1 and skip: skip = False
                else:
                    f.append(put(Vv(f"v_mul_f32 v{a}, v{x0+e}, v{a}", rd=[f"v{a}", f"v{x0+e}"], wr=[f"v{a}"]), ee)); skip = False
                continue
            f.append(put(Vv(f"v_fma_f32 v{a}, v{x0+e}, v{a}, v{x0+e}", rd=[f"v{a}", f"v{x0+e}"], wr=[f"v{a}"]), e0[e // 4] + 3, after=[(unp[x0], 1)]))
        last = None
        for q in range(4):
            a = (D0 + 2*q) if q < 2 else (D1 + 2*q - 4)
            c = Vv(f"v_cvt_pk_bf16_f32 v{dst+q}, v{a}, v{a+1}", rd=[f"v{a}", f"v{a+1}"], wr=[f"v{dst+q}"])
            if tag: c.name = ({}, tag)
            last = put(c, bt_last.pos + 1 if dst == TT else 0, after=[(x, 0) for x in f] + ([(last, 0)] if last else []))
        wr.append(put(I(f"ds_write_b128 {adr[0]}, {rng('v',dst,4)} offset:{adr[1]}", "X", rd=regs('v',dst,4), wr=["Lx1"]), 0, after=[(last, 1)]))
    ep(XS, XS+4, X0S, (acc_done[(6,4)], acc_done[(7,4)]), TT, (f"v{VS}", 0), None)
    for j in range(3):
        for r in (3, 2, 1, 0):
            ep(ACC0(2*j, r), ACC0(2*j+1, r), X0F(j, r, 0), (acc_done[(2*j, r)], acc_done[(2*j+1, r)]), XV(j, r), (f"v{VRD[0]}", (j*4+r)*1024), ('X', 1, (0, j), r))
    pl2 = put(I(f"global_load_dword v{VPOLLD}, v{VPOLL}, s[12:13] offset:128 sc1", "G", wr=[f"v{VPOLLD}"]), N0)
    assert min(x.pos for x in wl if x.kind == "B") >= max(26*12, bt_last.pos + 1)
    L0 = []
    lastg = max(p for p in range(G0.n) if G0.g[p])
    for p in range(lastg + 1):
        if p < N0: L0.append(M0[p])
        elif p == N0:
            L0.append(R("s_nop 3"))
            if cfg.st2: stamp(L0)
        if cfg.stamp and p < N0 and p % 26 == 0 and (p // 26) in cfg.stamp_steps: stamp(L0)
        L0.append(slot1[p] if p in slot1 else Wait())
        L0 += G0.ordered(p)
    stamp(L0)
    L0.append(Wait()); L0.append(I("s_barrier", "BAR", rd=["Lx1"]))
    if cfg.st2: stamp(L0)
    L0 += rest
    def rdx(slot, r):
        p, b = xreg(slot, r)
        if slot == 12: txt = f"ds_read_b128 {rng(p,b,4)}, v{VRD12} offset:{r*1024}"
        else: txt = f"ds_read_b128 {rng(p,b,4)}, v{VRD[slot[0]]} offset:{(slot[1]*4+r)*1024}"
        ins = I(txt, "D", wr=regs(p,b,4)); ins.name = ({}, ('X', 1, slot, r)); return ins
    oth = []
    for x in body:
        if x.kind == "M" and x.layer == 1 and x.pos < 52:
            tg = [v for v in x.name[0].values() if v[0] == 'X'][0]
            if tg[2] == 12 or tg[2][0] != 0: oth.append(rdx(tg[2], tg[3]))
    for _ in range(cfg.first_reads): L0.append(oth.pop(0))
    L0.append(Wait())
    nb = []
    for k, x in enumerate(body):
        nb.append(x)
        if isinstance(x, Wait) and x.layer == 1:
            extra = []
            if oth: extra.append(oth.pop(0))
            if x.pos == cfg.chk2 + 1:
                extra.append(Vv(f"v_cmp_gt_u32 vcc, 84, v{VPOLLD}", rd=[f"v{VPOLLD}"]))
            if x.pos == cfg.chk2 + 4:
                extra.append(R("s_cbranch_vccnz L_wait2\nL_ok2:"))
            for e in extra: e.layer, e.pos = x.layer, x.pos
            nb += extra
    body = nb
    if cfg.tstore: body = transpose_stores(body, cfg)
    full = S + L0 + body
    insert_waits(full)
    init = {f"s{SOWN}": ('s',1,0), f"s{SOWN12}": ('s',1,0), f"s{STS}": ('s',1,'S'), f"s{SSPEC}": ('s',1), f"v{VBIAS}": ('vb',1)}
    i0 = len(S) + len(L0)
    fix = R(""); fix.wr = regs('v', XS, 8); fix.name = ({}, ('XS', 1))
    check_tags(full[:i0] + [fix] + full[i0:], init)
    SPLIT = cfg.split
    segs = {}
    for x in body: segs.setdefault(min(x.layer + (1 if x.pos >= SPLIT else 0), cfg.nlayers), []).append(x)
    loop = [segs[k] for k in range(2, cfg.nlayers)]
    for sg in loop[1:]:
        assert len(sg) == len(loop[0]) and all(a.text == b.text and a.kind == b.kind for a, b in zip(sg, loop[0]))
    for tup in zip(*loop):
        if isinstance(tup[0], Wait):
            vm = [w.vmn for w in tup if w.vmn is not None]; lg = [w.lgn for w in tup if w.lgn is not None]
            for w in tup:
                w.vmn = min(vm) if vm else None; w.lgn = min(lg) if lg else None
    verify_waits(full)
    fin = segs[cfg.nlayers]
    errs = check_hazards(full)
    assert not errs, errs
    out = [f".globl {KN}\n.p2align 8\n.type {KN},@function\n{KN}:"]
    out += render(S) + render(L0) + render(segs[1])
    if cfg.diag: out.append("s_memrealtime s[64:65]\ns_waitcnt lgkmcnt(0)")
    if cfg.loopalign: out.append(".p2align 6")
    out.append("L_loop:")
    if cfg.stamp:
        out.append(f"{TM} s[64:65]\ns_waitcnt lgkmcnt(0)\ns_sub_u32 s64, s64, s{T0R}\ns_sub_u32 m0, {nst[0]+3}, s{SCNT}\ns_nop 0\nv_writelane_b32 v0, s64, m0")
        nst[0] += 4
    out += render(loop[0])
    out.append(f"s_sub_u32 s{SCNT}, s{SCNT}, 1\ns_cbranch_scc0 L_loop")
    if cfg.stamp:
        t = []; stamp(t); out += render(t)
    fr = render(fin)
    if cfg.abl == 'nostore': fr = [t for t in fr if not t.startswith("global_store")]
    if cfg.abl == 'laststore':
        idx = [i for i, t in enumerate(fr) if t.startswith("global_store")][:-4]
        fr = [t for i, t in enumerate(fr) if i not in idx]
    if cfg.abl == 'quadstore':
        fr = [f"v_lshrrev_b32 v{VOUT}, 6, v{VL16}\nv_mul_u32_u24 v{VOUT}, 832, v{VOUT}\nv_and_b32 v{VOUT12}, 48, v{VL16}\nv_add_u32 v{VOUT}, v{VOUT}, v{VOUT12}\ns_mul_i32 s42, s16, 13312\ns_add_u32 s42, s42, 768\nv_add_u32 v{VOUT12}, s42, v{VOUT}\ns_mul_i32 s42, s16, 192\nv_add_u32 v{VOUT}, s42, v{VOUT}"] + fr
    out += fr
    if cfg.stamp:
        out.append("s_memtime s[66:67]\ns_waitcnt vmcnt(0)\ns_memtime s[68:69]\ns_memrealtime s[70:71]\ns_waitcnt lgkmcnt(0)")
        out.append("s_sub_u32 s66, s66, s60\ns_sub_u32 s68, s68, s60")
        out.append(f"v_writelane_b32 v0, s{S_TRY}, 0\nv_writelane_b32 v0, s66, 1\nv_writelane_b32 v0, s68, 2\nv_writelane_b32 v0, s62, 3\nv_writelane_b32 v0, s70, 4")
        out.append(f"s_lshl_b32 s42, s2, 2\ns_add_u32 s42, s42, s16\ns_lshl_b32 s42, s42, 7\ns_add_u32 s42, s42, {4<<20}")
        out.append(f"v_lshrrev_b32 v9, 2, v{VL16}\nv_add_u32 v9, s42, v9\ns_mov_b64 exec, 0xffffffff\nglobal_store_dword v9, v0, s[14:15]")
    if cfg.diag:
        kind, K = cfg.diag
        out.append("s_waitcnt vmcnt(0)\ns_memrealtime s[66:67]\ns_waitcnt lgkmcnt(0)")
        if kind == 'total': out.append("s_sub_u32 s68, s66, s62")
        elif kind == 'l0': out.append("s_sub_u32 s68, s64, s62")
        elif kind == 'main': out.append("s_sub_u32 s68, s66, s64")
        elif kind == 'spin': out.append("s_mul_i32 s68, s90, 100")
        elif kind in ('skew',):
            out.append("s_not_b32 s69, s62\nv_mov_b32 v4, 32\nv_mov_b32 v5, s69\ns_mov_b64 exec, 1\nglobal_atomic_umax v4, v5, s[12:13] sc1\ns_waitcnt vmcnt(0)\ns_sleep 127\ns_sleep 127\ns_sleep 127\ns_sleep 127\nglobal_load_dword v6, v4, s[12:13] sc1\ns_waitcnt vmcnt(0)\nv_readfirstlane_b32 s69, v6\ns_not_b32 s69, s69\ns_sub_u32 s68, s62, s69\ns_memrealtime s[66:67]\ns_waitcnt lgkmcnt(0)")
        out.append(f"s_min_u32 s68, s68, 10000\ns_mul_i32 s68, s68, {K}")
        out.append("L_dspin:\ns_sleep 2\ns_memrealtime s[70:71]\ns_waitcnt lgkmcnt(0)\ns_sub_u32 s69, s70, s66\ns_cmp_lt_u32 s69, s68\ns_cbranch_scc1 L_dspin")
    out.append("s_endpgm")
    for t in sig_steps:
        out.append(f"L_sig{t}:\ns_mov_b64 exec, 1\nglobal_atomic_add v{BIAS}, v{BIAS+1}, s[12:13] sc1\ns_mov_b64 exec, -1\ns_branch L_sigret{t}")
    for k, cmp_ in ((1, f"v_cmp_gt_u32 vcc, 22, v{VPOLLD}"), (2, f"v_cmp_gt_u32 vcc, 84, v{VPOLLD}")):
        out.append(f"""L_wait{k}:
s_mov_b32 s{S_RET}, {k}
s_mov_b32 s{S_TRY}, {cfg.tries}
L_spin{k}:
s_sub_u32 s{S_TRY}, s{S_TRY}, 1
s_cbranch_scc1 L_self
{"s_add_u32 s90, s90, 1" if cfg.diag else ""}
s_sleep {cfg.psleep}
global_load_dword v{VPOLLD}, v{VPOLL}, s[12:13] offset:{128*(k-1)} sc1
s_waitcnt vmcnt(0)
{cmp_}
s_nop 4
s_cbranch_vccnz L_spin{k}
s_branch L_ok{k}""")
    fb = [f"L_self:\ns_cmp_eq_u32 s{S_RET}, 1\ns_cbranch_scc0 L_self2"] + [f"v_accvgpr_write_b32 a{112+i}, v{TT+i}" for i in range(16)]
    fb += [f"L_self2:\ns_mov_b32 s{SRD_US+2}, {6*LAYER_B}\ns_mov_b32 s{SRD_UD+2}, {WOFF + 6*LAYER_B}\ns_mov_b32 s17, 0\nL_selfloop:", unit_addr(17)]
    fb += [unit_load(e, TT).text for e in range(8)] + ["s_waitcnt vmcnt(0)"]
    fb += [unit_perm(p, h, TT).text for h in range(2) for p in range(4)] + [unit_store(h, TT).text for h in range(2)]
    fb.append(f"s_waitcnt vmcnt(0)\ns_add_u32 s17, s17, 1\ns_cmp_lt_u32 s17, {NUNIT}\ns_cbranch_scc1 L_selfloop")
    fb.append(f"s_cmp_eq_u32 s{S_RET}, 1\ns_cbranch_scc0 L_ok2")
    fb += [f"v_accvgpr_read_b32 v{TT+i}, a{112+i}" for i in range(16)] + ["s_branch L_ok1"]
    out += fb
    out.append("L_end:\ns_endpgm")
    info.update(sig_t=sig_t, l0_last=lastg, x_issue=x_issue)
    return "\n".join(out), info

class C2(Cfg):
    stamp = False
    stamp_steps = tuple(range(1, 13))
    codepf = True
    xflag = ""
    stflag = " nt"
    split = 54
    loopalign = True
    seq = ['karg','b0','x0','x1','w0','sb','u','sa','cq','x2','w1','cu','rd0','x3','w2','x4','w3','us']
    pfa = (0, 5)
    wsplit = 2

    dma_pos = [1, 4, 7, 10, 13, 16, 19]
    x_pos = [21, 23]
    late = 22
    diag = None
    psleep = 8
    st_pos = [160,190,220,250,262,274,286,298,310]
    tstore = True
    ts_lag = 6
    stflags = None
    mul0 = True
    pk0 = True
    st2 = False
    abl = None
    bt_from = 8
    bl_from = 26 + 20
    lag_bl = 3
    def_from = 0
    sig_pos = 2
    dma_pos_x = [1, 4, 7, 10, 13, 16, 19]
    ns = 4
    sig_step = 3
    lag_x = 3
    lag_st = 3
    lag_poll = 2
    pf1_off = 16
    nB = 5
    codepf_share = True
    unit_step = 1
    unpack_from = 26*4
    poll_step = 6
    wl_from = 26*9 + 1
    wl_step = 4
    first_reads = 8
    chk2 = 40
    tries = 20000

HEAD = """; DCN-v2 cross network, 6 layers, B=16384, D=416, bf16 (written out by my own scheduling script)
; Kernarg: x0, ws, bs, out, debug, workspace
"""
def gen(cfg):
    mk, info = main_kernel(cfg)
    txt = HEAD + f"; @launch grid=(256,1,1) block=(256,1,1) lds={LDS_BYTES}\n"
    txt += '.amdgcn_target "amdgcn-amd-amdhsa--gfx950"\n.text\n' + mk + "\n"
    txt += '.section .rodata,"a"\n.p2align 6\n' + kd(KN, 512, 256)
    return txt, info

if __name__ == "__main__":
    cfg = C2()
    for a in sys.argv[2:]:
        k, v = a.split("=", 1); assert hasattr(cfg, k), k; setattr(cfg, k, eval(v))
    txt, info = gen(cfg)
    open(sys.argv[1], "w").write(txt)
    print(info, len(txt.splitlines()), "lines")
```

```python
import sys
from fast import *

KN = "standalone__dcn_v2_cross__recsys_kernel"
import os
WOFF = int(os.environ.get('WOFF', 65536))
L_RING = 53248
BLK = 6664
STG = 4*BLK
L_B0 = L_RING + 4*STG
LDS_BYTES = L_B0 + 1024
def slot(t): return (t + 3) % 4
AORD = [0, 6, 7, 1, 8, 2, 9, 3, 10, 4, 11, 5, 12]
NUNIT = 845

for u in range(1024): assert (u*24819) >> 22 == u // 169
for u in range(169): assert (u*5042) >> 16 == u // 13
for u in range(64): assert (u*21846) >> 16 == u // 3

VL16, VL16B, VLW, VTR, VTR12, VUS, VPOLL, VPOLLD = 2, 3, 251, 252, 253, 254, 255, 1
def WB(b, t): return b*32 + t*4
def XB(b, r): return 64 + b*20 + r*4
def ACC0(t, r):
    if t >= 6: return XS + 4*(t-6)
    j, h = t // 2, t % 2
    if h == 0: return XV(j, r)
    return [ACC(0), X12(0), HOLD(0)][j] + 4*r
VXE, VXO, VXEW, VXOW, VXOWN, VXD = BIAS+2, BIAS+3, VLW, VOUT, VOUT12, SPEC
VTRB, VTR12B = SPEC+1, SPEC+2
CQ = 68
BT_A0, BT_SC = SPEC+3, 163
CRAW = 100
S_XM0, S_RM0 = 46, 47
SRD_US, SRD_UD, S_US0, S_US1, S_UD0, S_UD1 = 48, 52, 56, 57, 58, 59
S_SEL0, S_SEL1, SRD_B, S_PC = 72, 73, 76, 80
S_RET, S_TRY, S_SIG = 74, 75, 82
S_OWNX, S_PAR = 84, 88

def kd(name, nv, acc, ns=102):
    return f""".amdhsa_kernel {name}
  .amdhsa_next_free_vgpr {nv}
  .amdhsa_next_free_sgpr {ns}
  .amdhsa_accum_offset {acc}
  .amdhsa_group_segment_fixed_size 0
  .amdhsa_kernarg_size 48
  .amdhsa_user_sgpr_count 2
  .amdhsa_user_sgpr_kernarg_segment_ptr 1
  .amdhsa_system_sgpr_workgroup_id_x 1
  .amdhsa_float_denorm_mode_32 3
.end_amdhsa_kernel
"""
def R(txt): return I(txt, "S")
def Vv(txt, rd=(), wr=()): return I(txt, "V", rd=rd, wr=wr)

def unit_addr(ureg):
    return (f"s_mul_i32 s42, s{ureg}, 24819\ns_lshr_b32 s42, s42, 22\n"
            f"s_mul_i32 s43, s42, 169\ns_sub_u32 s43, s{ureg}, s43\n"
            f"s_mul_i32 s44, s43, 5042\ns_lshr_b32 s44, s44, 16\n"
            f"s_mul_i32 s45, s44, 13\ns_sub_u32 s45, s43, s45\n"
            f"s_add_u32 s42, s42, 1\ns_mul_i32 s42, s42, {LAYER_B}\n"
            f"s_mul_i32 s{S_US0}, s44, 26624\ns_add_u32 s{S_US0}, s{S_US0}, s42\ns_lshl_b32 s43, s45, 6\ns_add_u32 s{S_US0}, s{S_US0}, s43\n"
            f"s_add_u32 s{S_US1}, s{S_US0}, 3328\n"
            f"s_mul_i32 s{S_UD0}, s45, 26624\ns_add_u32 s{S_UD0}, s{S_UD0}, s42\ns_lshl_b32 s43, s44, 10\ns_add_u32 s{S_UD0}, s{S_UD0}, s43\n"
            f"s_add_u32 s{S_UD0}, s{S_UD0}, {WOFF}\ns_add_u32 s{S_UD1}, s{S_UD0}, {TILE_B}")
def unit_load(e, base):
    return I(f"buffer_load_dword v{base+e}, v{VUS}, s[{SRD_US}:{SRD_US+3}], s{S_US0 if e < 4 else S_US1} offen offset:{(e%4)*832}", "B", wr=[f"v{base+e}"])
def unit_perm(p, h, base):
    return Vv(f"v_perm_b32 v{base+8+4*h+p}, v{base+2*p+1}, v{base+2*p}, s{S_SEL1 if h else S_SEL0}", rd=[f"v{base+2*p+1}", f"v{base+2*p}"], wr=[f"v{base+8+4*h+p}"])
def unit_store(h, base):
    return I(f"buffer_store_dwordx4 {rng('v',base+8+4*h,4)}, v{VL16}, s[{SRD_UD}:{SRD_UD+3}], s{S_UD1 if h else S_UD0} offen sc1", "T", rd=regs('v',base+8+4*h,4), wr=["Mw"])


VWS, VWS12 = VTR, VTR12
def transpose_stores(body, cfg):
    NL = cfg.nlayers
    key = lambda x: (x.layer - (NL-1))*NM + x.pos
    head = [x for x in body if key(x) < cfg.split]
    tail = [x for x in body if key(x) >= cfg.split]
    G = Gaps(NM + 200)
    mf = {}
    moved = []
    stores = []
    for x in tail:
        p = key(x)
        if x.kind == "M": mf[p] = x
        elif isinstance(x, Wait): pass
        elif x.kind == "T": stores.append((p, x))
        elif x.name and x.name[1] and x.name[1][0] == 'U' and (x.name[1][2] % 2 == 0 or x.name[1][2] == 1): moved.append((p, x))
        else: x.pos = p; G.g[p].append(x)
    fpos = {x.name[1][1:]: x.pos for g in G.g for x in g if x.name and x.name[1] and x.name[1][0] == 'F'}
    prev = None
    for txt in [f"v_bfe_u32 v{VLW}, v{VL16}, 5, 2", f"v_lshrrev_b32 v{VWS}, 8, v{VL16}", f"v_xor_b32 v{VLW}, v{VLW}, v{VWS}",
                f"v_and_b32 v{VWS}, 0xf0, v{VL16}", f"v_lshlrev_b32 v{VWS}, 2, v{VWS}", f"v_lshl_add_u32 v{VWS}, v{VLW}, 4, v{VWS}",
                f"s_add_u32 s42, s{S_XM0}, {L_X12}", f"v_add_u32 v{VWS12}, s42, v{VWS}", f"s_mul_i32 s42, s16, {GSTR}", f"v_add_u32 v{VWS}, s42, v{VWS}",
                f"v_bfe_u32 v{VLW}, v{VL16}, 7, 2", f"v_bfe_u32 v{VOUT}, v{VL16}, 4, 2", f"v_xor_b32 v{VLW}, v{VLW}, v{VOUT}",
                f"v_lshrrev_b32 v{VOUT}, 6, v{VL16}", f"v_mul_u32_u24 v{VOUT}, 832, v{VOUT}", f"v_lshl_add_u32 v{VOUT}, v{VLW}, 4, v{VOUT}",
                f"s_mul_i32 s42, s16, 13312", f"s_add_u32 s42, s42, 768", f"v_add_u32 v{VOUT12}, s42, v{VOUT}", f"s_mul_i32 s42, s16, 192", f"v_add_u32 v{VOUT}, s42, v{VOUT}"]:
        prev = G.place(Vv(txt) if txt[0] == 'v' else R(txt), cfg.split + 4 if prev is None else prev.pos + 1)
    free = {}; lastdef = 0
    for p, x in stores: G.g[p].append(I('', 'X'))
    for n, (p, x) in enumerate(stores):
        d = int(x.rd[0][1:]); shared = d == TT + 12
        assert p > prev.pos
        if shared: wa, ra = f"v{VWS12}", f"v{VS}"; wo = ""
        else:
            j = int(x.text.split("offset:")[1].split()[0]) // 64; r = (d - HOLD(0)) // 4
            wa, wo, ra = f"v{VWS}", f" offset:{(j*4+r)*1024}", f"v{VRD[0]} offset:{(j*4+r)*1024}"
        w = I(f"ds_write_b128 {wa}, {rng('v',d,4)}{wo}", "X", rd=x.rd); w.name = x.name; w.pos = p; G.g[p] = [y for y in G.g[p] if y.text] + [w]
        if cfg.st_pos and n < len(cfg.st_pos) and cfg.st_pos[n]:
            src = x.rd; t_ = SPEC
            x.text = x.text.replace(rng('v',d,4), rng('v',t_,4)); x.rd = regs('v',t_,4)
            rd = I(f"ds_read_b128 {rng('v',t_,4)}, {ra}", "D", wr=x.rd); rd.name = ({}, ('TR', n))
            G.place(rd, max(p + 1, cfg.st_pos[n] - cfg.ts_lag, lastdef + 1))
            x.name = ({q: ('TR', n) for q in x.rd}, None)
            G.place(x, rd.pos + cfg.ts_lag); lastdef = x.pos
            for q in src: free.setdefault(q, []).append((p, p))
            continue
        rd = I(f"ds_read_b128 {rng('v',d,4)}, {ra}", "D", wr=x.rd); rd.name = ({}, ('TR', n))
        G.place(rd, p + 1)
        x.name = ({q: ('TR', n) for q in x.rd}, None)
        fl = cfg.stflags[min(n, len(cfg.stflags)-1)] if cfg.stflags else None
        if fl is not None: x.text = x.text.replace(cfg.stflag, fl)
        G.place(x, rd.pos + cfg.ts_lag)
        for q in x.rd: free.setdefault(q, []).append((p, x.pos))
    for p, x in moved:
        tg = x.name[1]; dl = fpos[tg[1:]] - 1
        e = max([p] + [b + 1 for a, b in free.get(x.wr[0], []) if a < dl])
        G.place(x, e, dl)
    out = []
    for p in range(cfg.split, G.n):
        lst = G.ordered(p)
        if p in mf: out.append(mf[p])
        if p in mf or lst:
            w = Wait(); out.append(w); out += lst
            for y in [w] + lst: y.layer, y.pos = NL - 1 + p // NM, p % NM
    return head + out

def main_kernel(cfg):
    mf, G, items, info = build_schedule(cfg)
    pre, body = unroll(mf, G, cfg, 1)
    S = []
    A = lambda t: S.append(R(t))
    nst = [5]
    TM, T0R = ("s_memrealtime", 62) if cfg.stamp == 'rt' else ("s_memtime", 60)
    def stamp(lst=None):
        if not cfg.stamp: return
        t = R(f"{TM} s[64:65]\ns_waitcnt lgkmcnt(0)\ns_sub_u32 s64, s64, s{T0R}\nv_writelane_b32 v0, s64, {nst[0]}")
        nst[0] += 1
        (S if lst is None else lst).append(t)
    if cfg.stamp: A(f"s_memtime s[60:61]\ns_memrealtime s[62:63]\ns_mov_b32 s{S_TRY}, 0")
    if cfg.diag: A(f"s_memrealtime s[62:63]\ns_mov_b32 s{S_TRY}, {cfg.tries}\ns_mov_b32 s90, 0")
    A("s_cmp_ge_u32 s2, 256\ns_cbranch_scc1 L_end")
    A("s_load_dwordx8 s[4:11], s[0:1], 0\ns_load_dwordx4 s[12:15], s[0:1], 32")
    if cfg.codepf:
        A(f"s_getpc_b64 s[{S_PC}:{S_PC+1}]\nL_pc:")
        if cfg.codepf_share:
            A("s_lshr_b32 s42, s2, 3\ns_and_b32 s42, s42, 31\nv_and_b32 v4, 0xe0, v0\nv_add_u32 v4, s42, v4\nv_lshlrev_b32 v4, 7, v4")
        else: A("v_lshlrev_b32 v4, 7, v0")
        A("v_min_u32 v4, L_end-L_pc, v4")
        S.append(I(f"global_load_dword v{VPFD}, v4, s[{S_PC}:{S_PC+1}]", "G", wr=[f"v{VPFD}"]))
    A("v_lshrrev_b32 v1, 6, v0\nv_and_b32 v0, 63, v0\ns_nop 0\nv_readfirstlane_b32 s16, v1")
    A(f"v_lshlrev_b32 v{VL16}, 4, v0\nv_add_u32 v{VL16B}, 4096, v{VL16}")
    A("v_and_b32 v5, 15, v0\nv_lshrrev_b32 v6, 4, v0\nv_lshlrev_b32 v1, 4, v6\nv_bfe_u32 v8, v0, 2, 2\nv_and_b32 v12, 48, v2")
    A(f"s_mul_i32 s43, s16, 13312\nv_lshrrev_b32 v9, 3, v0\nv_mul_u32_u24 v9, 1664, v9\nv_and_b32 v10, 32, v0\nv_and_b32 v11, 0x70, v{VL16}\nv_xor_b32 v10, v11, v10\nv_add3_u32 v{VXD}, v9, v10, s43")
    A("s_mul_i32 s42, s16, 3\nv_add_u32 v13, s42, v6\nv_cmp_eq_u32 vcc, 3, v6\nv_mov_b32 v14, 12\nv_lshlrev_b32 v15, 2, v5\nv_cndmask_b32 v13, v13, v14, vcc\nv_lshl_add_u32 v14, v13, 6, v15")
    A(f"s_lshl_b32 s96, s16, 8\ns_add_u32 s96, s96, {L_B0}")
    A(f"s_lshl_b32 s{S_XM0}, s16, 10\ns_mul_i32 s{S_RM0}, s16, {BLK}\ns_add_u32 s{S_RM0}, s{S_RM0}, {L_RING}")
    A("s_mul_i32 s31, s2, 53248\ns_mul_i32 s83, s16, 6656")
    def setup_pf():
      A(f"s_lshr_b32 s44, s2, 3\ns_and_b32 s44, s44, 31\ns_lshl_b32 s44, s44, 2\ns_add_u32 s44, s44, s16")
      A(f"v_lshrrev_b32 v{VPF}, 4, v{VL16}\nv_mul_u32_u24 v{VPF}, 21846, v{VPF}\nv_lshrrev_b32 v{VPF}, 16, v{VPF}\nv_lshl_add_u32 v{VPF}, v{VPF}, 7, s44\nv_min_u32 v{VPF}, 2703, v{VPF}\nv_lshlrev_b32 v{VPF}, 7, v{VPF}")
    early_pf = any(e.startswith('pf') for e in cfg.seq)
    if early_pf: setup_pf()
    sigsetup = R('')
    def setup_a():
        A("s_mul_i32 s42, s16, 192")
        A(f"v_mul_u32_u24 v10, {BLK}, v6\nv_mul_u32_u24 v11, 832, v8\nv_add3_u32 v10, v10, v11, v12")
        A(f"s_add_u32 s42, s42, {L_RING}\nv_add_u32 v{VTR}, s42, v10\nv_add_u32 v{VTR12}, {L_RING+768}, v10")
        A(f"v_add_u32 v{VTRB}, {2*STG}, v{VTR}\nv_add_u32 v{VTR12B}, {2*STG}, v{VTR12}")
        A(f"v_lshlrev_b32 v34, 2, v5\nv_and_b32 v34, 32, v34\nv_xor_b32 v34, v34, v1\nv_lshl_add_u32 v34, v5, 6, v34\nv_and_b32 v35, 1, v5")
        A(f"v_mul_u32_u24 v36, 24576, v35\nv_add_u32 v{VXE}, v34, v36\nv_xor_b32 v34, 64, v34\nv_mul_u32_u24 v36, 28672, v35\nv_add_u32 v{VXO}, v34, v36")
        A(f"v_add_u32 v{VXEW}, s{S_XM0}, v{VXE}\nv_add_u32 v{VXOW}, s{S_XM0}, v{VXO}")
        A(f"v_add_u32 v{VBIAS}, s96, v1\ns_mov_b32 s{SMASK}, 0xffff0000")
    def setup_b():
        A(f"v_mul_u32_u24 v{VUS}, 6656, v6\nv_lshl_add_u32 v{VUS}, v5, 2, v{VUS}")
        A(f"s_lshl_b32 s17, s2, 2\ns_add_u32 s17, s17, s16")
        A(unit_addr(17))
        A(f"s_cmp_lt_u32 s17, {NUNIT}\ns_cselect_b32 s{SRD_US+2}, {6*LAYER_B}, 0\ns_cselect_b32 s{SRD_UD+2}, {WOFF + 6*LAYER_B}, 0")
        A(f"s_mov_b32 s{SRD_US+3}, 0x20000\ns_mov_b32 s{SRD_UD+3}, 0x20000\ns_mov_b32 s{S_SEL0}, 0x05040100\ns_mov_b32 s{S_SEL1}, 0x07060302")
    def setup_c():
        A(f"s_mul_i32 s97, s16, 3\ns_mul_i32 s99, s16, {GSTR}\ns_add_u32 s99, s99, {L_BIAS}\ns_lshr_b32 s98, s16, 1\ns_lshl_b32 s98, s98, 6")
        S.append(sigsetup)
        if not early_pf: setup_pf()
        for d in range(4):
            A(f"s_add_u32 s42, s16, {d}\ns_and_b32 s42, s42, 3\ns_mul_i32 s44, s42, 3072\ns_lshl_b32 s43, s44, 2")
            A(f"v_add_u32 v{VRD[d]}, s43, v{VL16}\nv_add_u32 v{VW[d]}, s44, v{VL16}")
        A(f"v_add_u32 v{VRD12}, {L_X12}, v{VL16}\nv_add_u32 v{VS}, s{S_XM0}, v{VRD12}")
        A(f"s_mov_b32 s{SCNT}, {cfg.nlayers-3}\nv_and_b32 v{VPOLL}, 16, v{VL16}\nv_lshlrev_b32 v{VPOLL}, 2, v{VPOLL}")
        for j in range(3):
            A(f"s_add_u32 s42, s97, {j}\ns_lshr_b32 s42, s42, 1\ns_lshl_b32 s{S_OWNX+j}, s42, 12")
        A(f"s_bitcmp1_b32 s16, 0\ns_cselect_b64 s[{S_PAR}:{S_PAR+1}], -1, 0")
    def setup_p():
        A(f"s_add_u32 s{SPF}, s14, {WOFF + LAYER_B}\ns_addc_u32 s{SPF+1}, s15, 0")
        A(f"s_mul_i32 s42, s16, {6*TILE_B}\ns_add_u32 s{SOWN}, s{SPF}, s42\ns_addc_u32 s{SOWN+1}, s{SPF+1}, 0")
        A(f"s_sub_u32 s{SOWN12}, s{SOWN}, {L_X12-12288}\ns_subb_u32 s{SOWN12+1}, s{SOWN+1}, 0")
        A(f"s_lshr_b32 s42, s16, 1\ns_add_u32 s42, s42, 24\ns_mul_i32 s42, s42, {TILE_B}")
        A(f"s_add_u32 s{STS}, s{SPF}, s42\ns_addc_u32 s{STS+1}, s{SPF+1}, 0\ns_add_u32 s{SSPEC}, s42, {12288 + LAYER_B + WOFF - L_X12}")
        A(f"s_mov_b32 s{SRD}, s14\ns_mov_b32 s{SRD+1}, s15\ns_mov_b32 s{SRD+3}, 0x20000")
        A(f"s_and_b32 s42, s16, 1\ns_cmp_eq_u32 s42, 0\ns_cselect_b32 s{SRD+2}, {WOFF + 6*LAYER_B}, 0")
        for r in range(4):
            A(f"s_add_u32 s42, s31, {r*13312}\ns_add_u32 s{SOUT(r)}, s10, s42\ns_addc_u32 s{SOUT(r)+1}, s11, 0")
    def do_karg():
        A("s_waitcnt lgkmcnt(0)")
        stamp()
        A(f"s_mov_b32 s{SRD_US}, s6\ns_mov_b32 s{SRD_US+1}, s7")
        A("s_add_u32 s4, s4, s31\ns_addc_u32 s5, s5, 0")
        A("s_add_u32 s6, s6, s83\ns_addc_u32 s7, s7, 0")
    def do_cq():
        S.append(Wait())
        for u in range(4):
            S.append(I(f"ds_read_b128 {rng('v',CRAW+4*u,4)}, v{VBIAS} offset:{u*64}", "D", rd=["Lb0"], wr=regs('v',CRAW+4*u,4)))
    def do_cu():
        for u in range(4):
            S.append(Wait())
            for q in range(4):
                S.append(Vv(f"v_lshlrev_b32 v{CQ+8*u+2*q}, 16, v{CRAW+4*u+q}", rd=[f"v{CRAW+4*u+q}"], wr=[f"v{CQ+8*u+2*q}"]))
                S.append(Vv(f"v_and_b32 v{CQ+8*u+2*q+1}, s{SMASK}, v{CRAW+4*u+q}", rd=[f"v{CRAW+4*u+q}"], wr=[f"v{CQ+8*u+2*q+1}"]))
            if cfg.mul0:
                for q in range(4):
                    a = CQ+8*u+2*q
                    S.append(Vv(f"v_pk_add_f32 v[{a}:{a+1}], v[{a}:{a+1}], 1.0 op_sel_hi:[1,0]", rd=[f"v{a}", f"v{a+1}"], wr=[f"v{a}", f"v{a+1}"]))
    def xdma(s):
        o = AORD[s]*128
        return [R(f"s_add_u32 m0, s{S_XM0}, {AORD[s]*4096 - o}"),
                I(f"global_load_lds_dwordx4 v{VXD}, s[4:5] offset:{o}{cfg.xflag}", "G", wr=[f"Lxc{s}"])]
    def wdma(t, i):
        v = VL16 if i < 4 else VL16B
        txt = f"global_load_lds_dwordx4 v{v}, s[6:7] offset:{(i%4)*1024}"
        if i == 6: txt = "s_mov_b64 exec, 0xffffffff\n" + txt + "\ns_mov_b64 exec, -1"
        return I(txt, "G", wr=[f"Lw{t}"])
    def wm0(t, i): return R(f"s_add_u32 m0, s{S_RM0}, {slot(t)*STG + (4096 if i >= 4 else 0)}")
    def wadv(t):
        x = "s_add_u32 s6, s6, 26624\ns_addc_u32 s7, s7, 0"
        return R(x)
    def pro_x(s):
        a, b = xdma(s); S.extend([a, R("s_nop 0"), b])
    def pro_w(t, lo=0, hi=7):
        for i in range(lo, hi):
            if i in (lo, 4): S.extend([wm0(t, i), R("s_nop 0")])
            S.append(wdma(t, i))
        if hi == 7: S.append(wadv(t))
    def pf_w0(lo, hi):
        m = ((1 << min(3*hi, 64)) - 1) ^ ((1 << 3*lo) - 1)
        txt = f"global_load_dword v{VPFD}, v{VPF}, s[{SRD_US}:{SRD_US+1}]"
        if m != (1 << 64) - 1:
            txt = f"s_mov_b32 exec_lo, {hex(m & 0xffffffff)}\ns_mov_b32 exec_hi, {hex(m >> 32)}\n{txt}\ns_mov_b64 exec, -1"
        return I(txt, "G", wr=[f"v{VPFD}"])
    def pro_seq(seq):
        for e in seq:
            if e == 'pf': S.append(pf_w0(0, 22))
            elif e == 'pfa': S.append(pf_w0(*cfg.pfa))
            elif e == 'pfb': S.append(pf_w0(cfg.pfa[1], 22))
            elif e == 'u':
                A(f"s_mov_b32 s{SRD_UD}, s14\ns_mov_b32 s{SRD_UD+1}, s15")
                for k in range(8): S.append(unit_load(k, TT))
            elif e == 'us':
                S.append(Wait())
                S.extend([unit_perm(p, h, TT) for h in range(2) for p in range(4)] + [unit_store(h, TT) for h in range(2)])
            elif e == 'b0':
                A("s_mov_b32 m0, s96\ns_nop 0")
                S.append(I("global_load_lds_dword v14, s[8:9]", "G", wr=["Lb0"]))
            elif e == 'tw':
                A(f"v_and_b32 v15, 16, v{VL16}\nv_mul_u32_u24 v15, {(3<<20)//16}, v15\nv_add_u32 v15, {WOFF - 65536}, v15")
                S.append(I(f"global_load_dword v{VPFD}, v15, s[14:15]", "G", wr=[f"v{VPFD}"]))
            elif e == 'to':
                A(f"v_mov_b32 v15, s31")
                S.append(I(f"global_load_dword v{VPFD}, v15, s[10:11]", "G", wr=[f"v{VPFD}"]))
            elif e[0] == 'x': pro_x(int(e[1:]))
            elif e[0] == 'w' and e[-1] == 'a': pro_w(int(e[1:-1]), 0, cfg.wsplit)
            elif e[0] == 'w' and e[-1] == 'b': pro_w(int(e[1:-1]), cfg.wsplit, 7)
            elif e[0] == 'w': pro_w(int(e[1:]))
            else: raise ValueError(e)
    def reads(t):
        b, sl = t % 2, slot(t)
        out = []
        def xr(r):
            d = XB(b, r)
            if r == 4: txt = f"v{VXOW if t % 2 else VXEW} offset:{(t//2)*4096}"
            else: txt = f"v{VXO if t % 2 else VXE} offset:{(t//2)*4096 + r*1024}"
            ins = I(f"ds_read_b128 {rng('a',d,4)}, {txt}", "D", rd=[txt.split()[0]], wr=regs('a',d,4)); ins.name = ({}, ('x0', t, r)); return ins
        def wr_(tt, p):
            d = WB(b, tt) + 2*p
            if tt >= 6: txt = f"v{VTR12B if sl >= 2 else VTR12} offset:{(sl%2)*STG + p*3328 + 8*(tt-6)}"
            else: txt = f"v{VTRB if sl >= 2 else VTR} offset:{(sl%2)*STG + p*3328 + (tt//2)*64 + 8*(tt%2)}"
            ins = I(f"ds_read_b64_tr_b16 {rng('a',d,2)}, {txt}", "D", wr=regs('a',d,2)); ins.name = ({}, ('w0', t, tt)); return ins
        out += [xr(4), wr_(6,0), wr_(6,1), wr_(7,0), wr_(7,1), wr_(0,0), wr_(0,1), xr(0), xr(1), xr(2), xr(3)]
        for tt in range(1, 6): out += [wr_(tt, 0), wr_(tt, 1)]
        return out
    def bar(t, extra=()):
        need = [f"Lw{t+1}"] + [f"Lxc{i}" for i in range(min(t+2, 12) + 1)] if t < 12 else []
        if t >= 0: need += [r for x in reads(t) for r in x.wr]
        return I("s_barrier", "BAR", rd=need + list(extra))
    for e in cfg.seq:
        if e in ('sa', 'sb', 'sc', 'sp'): dict(sa=setup_a, sb=setup_b, sc=setup_c, sp=setup_p)[e]()
        elif e == 'karg': do_karg()
        elif e == 'cq': do_cq()
        elif e == 'cu': do_cu()
        elif e.startswith('wait:'):
            S.append(Wait()); S.append(I("s_nop 0", "S", rd=[e[5:]])); stamp()
        elif e == 'st': stamp()
        elif e == 'rd0':
            S.append(Wait()); S.append(bar(-1)); stamp(); S.extend(reads(0))
        else: pro_seq([e])
    S.append(Wait()); S.append(bar(0))
    stamp()

    deferred = []
    for e in ('sc', 'sp'):
        if e not in cfg.seq:
            n0 = len(S); dict(sc=setup_c, sp=setup_p)[e](); deferred += S[n0:]; del S[n0:]
    N0 = 338
    NS = cfg.ns
    G0 = Gaps(N0 + 400)
    slot1 = {}
    M0 = []
    order = [(6, 4), (7, 4)]
    for tt in range(6): order += [(tt, r) for r in ([0,1,2,3] if tt % 2 == 0 else [3,2,1,0])]
    acc_done = {}
    for t in range(13):
        b = t % 2
        for (tt, r) in order:
            a = ACC0(tt, r); c = (CQ + 4*tt) if t == 0 else a
            ins = I(f"v_mfma_f32_16x16x32_bf16 {rng('v',a,4)}, {rng('a',WB(b,tt),4)}, {rng('a',XB(b,r),4)}, {rng('v',c,4)}", "M",
                    rd=regs('a',WB(b,tt),4)+regs('a',XB(b,r),4), wr=regs('v',a,4), srcc=regs('v',c,4))
            exp = {x: ('w0', t, tt) for x in regs('a',WB(b,tt),4)}; exp.update({x: ('x0', t, r) for x in regs('a',XB(b,r),4)})
            if t: exp.update({x: ('a0', tt, r) for x in regs('v',a,4)})
            ins.name = (exp, ('a0', tt, r))
            acc_done[(tt, r)] = len(M0)
            M0.append(ins)
    def put(ins, p, latest=None, after=()): return G0.place(ins, p, latest, after)
    def put1(ins, p):
        assert p not in slot1 and p % 26 != 25, p
        slot1[p] = ins; ins.pos = p
    def puts(ins, p, latest=None):
        lines = ins.text.split("\n")
        while any((p+i) in slot1 or (p+i) % 26 == 25 for i in range(len(lines))): p += 1
        for i, t in enumerate(lines):
            x = ins if i == len(lines) - 1 else R(t)
            x.text = t; put1(x, p + i)
        assert latest is None or ins.pos <= latest, (ins.text, ins.pos, latest)
        return ins
    wl = [x for x in pre if x.tag.cls in ('wload', 'wupd')]
    rest = [x for x in pre if x.tag.cls not in ('wload', 'wupd')]
    xq = [s for s in range(13) if f"x{s}" not in cfg.seq]
    x_issue = {s: -1 for s in range(13) if s not in xq}
    bars = {}; advs = []; xadvs = []
    for t in range(13):
        g0 = 26*t
        if t < 12:
            bars[t+1] = put(bar(t+1), g0 + 25, g0 + 25)
            rp = [q for q in range(25) if not (t + NS <= 12 and q == (cfg.dma_pos_x if xq else cfg.dma_pos)[6])]
            for i, x in enumerate(reads(t+1)): put(x, g0 + rp[i], g0 + rp[i])
        ev = []
        dp = cfg.dma_pos_x if xq else cfg.dma_pos
        if t + NS <= 12:
            ev += [(p, wm0(t+NS, i), wdma(t+NS, i), i) for i, p in enumerate(dp)]
            advs.append((g0, dp[6]))
        for p in cfg.x_pos:
            if xq:
                s = xq.pop(0); a, bb = xdma(s); ev.append((p, a, bb, None)); x_issue[s] = t
                assert s >= t + 3
                xadvs.append((g0 + p, s))
        cur = None; lastp = -2
        for p, m, ins, i in sorted(ev, key=lambda e: e[0]):
            if m.text != cur:
                assert p - 1 > lastp, (t, p)
                put1(m, g0 + p - 1); cur = m.text
            if i == 6:
                a, bb, c = ins.text.split("\n"); put1(R(a), g0 + p); ins.text = bb + "\n" + c
            put(ins, g0 + p, g0 + p); lastp = p
    assert not xq
    def put_adv(ins, p, latest):
        ln = ins.text.split("\n")
        for i in range(0, len(ln), 2):
            x = puts(R(ln[i] + "\n" + ln[i+1]), p, latest); p = x.pos + 1
    for g0, dl in advs: put_adv(wadv(g0 // 26 + NS), g0 + dl + 1, g0 + 26)
    g = 26*cfg.unit_step
    tt_free = 0
    if 'us' in cfg.seq: sig_t = cfg.sig_step
    else:
        bars[cfg.unit_step].rd += regs('v', TT, 8)
        pm = [put(unit_perm(p, h, TT), g) for h in range(2) for p in range(4)]
        st = [put(unit_store(h, TT), g + cfg.late, after=[(x, 1) for x in pm]) for h in range(2)]
        sig_t = st[1].pos // 26 + cfg.lag_st; tt_free = st[1].pos + 2
    bars[sig_t].rd.append("Mw")
    sig_steps = list(range(sig_t, min(sig_t + cfg.nB, 11) + 1))
    for t in sig_steps:
        x = puts(R(f"s_cmp_eq_u32 s{S_SIG}, {t}\ns_cbranch_scc1 L_sig{t}"), 26*t + cfg.sig_pos, 26*t + 24)
        x.text += f"\nL_sigret{t}:"
    nb_ = len(sig_steps) - 1
    sigsetup.text = (f"s_lshr_b32 s42, s2, 1\ns_mul_i32 s43, s42, {65536 // nb_ + 1}\ns_lshr_b32 s43, s43, 16\ns_mul_i32 s43, s43, {nb_}\ns_sub_u32 s42, s42, s43\ns_add_u32 s42, s42, {sig_t + 1}\n"
                     f"s_cmp_lt_u32 s2, 44\ns_cselect_b32 s42, {sig_t}, s42\ns_cselect_b32 s43, 0, 128\n"
                     f"s_cmp_lt_u32 s2, 212\ns_cselect_b32 s42, s42, 255\ns_cmp_eq_u32 s16, 0\ns_cselect_b32 s{S_SIG}, s42, 255\n"
                     f"s_and_b32 s42, s2, 1\ns_lshl_b32 s42, s42, 6\ns_add_u32 s42, s42, s43\nv_mov_b32 v{BIAS}, s42\nv_mov_b32 v{BIAS+1}, 1")
    assert all((u*(65536 // nb_ + 1)) >> 16 == u // nb_ for u in range(128))
    lines = [l for x in deferred for l in x.text.split("\n") if l]
    groups = []
    for l in lines:
        if l.startswith(("s_addc", "s_subb", "s_cselect")): groups[-1].append(l)
        else: groups.append([l])
    p = cfg.def_from; defpos = {}
    for gr in groups:
        if gr[0].startswith("v_"): x = put(Vv(gr[0]), p)
        else: x = puts(R("\n".join(gr)), p)
        for l in gr: defpos[l.split()[1].rstrip(",")] = x.pos
        p = x.pos + (0 if not gr[0].startswith("v_") and False else 1)
    if groups:
        assert defpos[f"v{BIAS+1}"] < 26*sig_steps[0] + cfg.sig_pos and defpos["s98"] < cfg.bt_from
        assert defpos[f'v{VPOLL}'] < 26*cfg.poll_step + cfg.late and p < 26*(cfg.poll_step + cfg.lag_poll), p
    pl = put(I(f"global_load_dword v{VPOLLD}, v{VPOLL}, s[12:13] sc1", "G", wr=[f"v{VPOLLD}"]), 26*cfg.poll_step + cfg.late)
    bars[cfg.poll_step + cfg.lag_poll].rd.append(f"v{VPOLLD}")
    ck = 26*(cfg.poll_step + cfg.lag_poll)
    c1 = put(Vv(f"v_cmp_gt_u32 vcc, 22, v{VPOLLD}", rd=[f"v{VPOLLD}"]), ck)
    br = puts(R("s_cbranch_vccnz L_wait1"), c1.pos + 2); br.text += "\nL_ok1:"
    pf1 = put(I(f"global_load_dword v{VPFD}, v{VPF}, s[{SPF}:{SPF+1}]{cfg.ldflag}", "G", wr=[f"v{VPFD}"]), max(br.pos, ck + cfg.pf1_off))
    puts(R(f"s_add_u32 s{SPF}, s{SPF}, {LAYER_B}\ns_addc_u32 s{SPF+1}, s{SPF+1}, 0"), pf1.pos + 1)
    p = max(cfg.wl_from, pf1.pos + 1); prev = None
    for x in wl:
        if x.vm:
            prev = put(x, max(p if prev is None else prev.pos + cfg.wl_step, 26*12 + 4 if x.kind == 'B' else 0), after=[(lastu, 0)] if prev is not None and lastu else [])
            lastu = None
        else:
            lastu = puts(x, prev.pos + 1)
    T0, T1, T2 = 160, 161, 162
    x = None
    for txt in [f"v_bfe_u32 v{T0}, v{VL16}, 6, 2", f"v_cmp_eq_u32 vcc, 3, v{T0}", f"v_add_u32 v{T1}, s97, v{T0}", f"v_mov_b32 v{T2}, 12",
                f"v_cndmask_b32 v{T1}, v{T1}, v{T2}, vcc", f"v_mov_b32 v{T2}, 0.5", f"v_cndmask_b32 v{BT_SC}, 1.0, v{T2}, vcc",
                f"v_mov_b32 v{T2}, s98", f"v_cndmask_b32 v{T2}, 0, v{T2}, vcc",
                f"v_lshl_add_u32 v{T2}, v{T0}, 7, v{T2}", f"v_and_b32 v{T0}, 48, v{VL16}", f"v_lshl_add_u32 v{T1}, v{T1}, 6, v{T0}",
                f"v_add3_u32 v{T2}, v{T2}, v{T0}, s99", f"v_lshrrev_b32 v{T0}, 8, v{VL16}", f"v_lshl_add_u32 v{BT_A0}, v{T0}, 9, v{T2}",
                f"v_mul_u32_u24 v{T0}, 832, v{T0}", f"v_add_u32 v{T0}, v{T0}, v{T1}"]:
        x = put(Vv(txt), cfg.bt_from if x is None else x.pos + 1)
    bl = [put(I(f"global_load_dwordx4 {rng('v',TT+8*rd+4,4)}, v{T0}, s[8:9] offset:{1664*rd}", "G", wr=regs('v',TT+8*rd+4,4)), max(x.pos + 1 + rd, tt_free, cfg.bl_from)) for rd in range(2)]
    tb = bl[1].pos // 26 + cfg.lag_bl
    bars[tb].rd += regs('v', TT+4, 4) + regs('v', TT+12, 4)
    u_ = []
    for rd in range(2):
        for q in range(4):
            lo, hi = TT+8*rd+q, TT+8*rd+4+q
            x = put(Vv(f"v_lshlrev_b32 v{lo}, 16, v{hi}", rd=[f"v{hi}"], wr=[f"v{lo}"]), 26*tb)
            y = put(Vv(f"v_and_b32 v{hi}, s{SMASK}, v{hi}", rd=[f"v{hi}"], wr=[f"v{hi}"]), x.pos)
            u_ += [put(Vv(f"v_mul_f32 v{r_}, v{BT_SC}, v{r_}", rd=[f"v{r_}"], wr=[f"v{r_}"]), y.pos) for r_ in (lo, hi)]
    x = None
    for h in range(2):
        for rd in range(2):
            x = put(I(f"ds_write_b128 v{BT_A0}, {rng('v',TT+8*rd+4*h,4)} offset:{1024*rd}", "X", rd=regs('v',TT+8*rd+4*h,4)), max(26*11, 0 if x is None else x.pos + 1), after=[(y, 1) for y in u_])
        if h == 0: x = put(Vv(f"v_xor_b32 v{BT_A0}, 64, v{BT_A0}"), x.pos + 1)
    y = put(Vv(f"v_and_b32 v{VBIAS}, 48, v{VBIAS}"), 26*2)
    put(Vv(f"v_add3_u32 v{VBIAS}, v{VBIAS}, s99, v{T0}"), put(Vv(f"v_mov_b32 v{T0}, 512"), max(y.pos, bl[1].pos + 1)).pos + 1)
    bt_last = x; bt_valu = max(y.pos for y in u_)
    assert bt_valu < c1.pos
    ux = []
    for j in range(3):
        for r in range(4):
            ux.append((10 + j, X0F(j, r, 0), f"v{VXOWN} offset:{r*1024}"))
    ux.append((12, X0S, f"v{VXEW} offset:24576"))
    prev = None; rds = []; unp = {}
    for (s, d, adr) in ux:
        tb = max(x_issue[s] + cfg.lag_x, 1)
        if f"Lxc{s}" not in bars[tb].rd: bars[tb].rd.append(f"Lxc{s}")
        e = max(26*tb, cfg.unpack_from, bt_valu + 1 if d == X0F(2, 3, 0) else 0)
        if len(rds) % 4 == 0 and len(rds) < 12:
            j = len(rds) // 4
            a_, b_ = (VXE, VXO) if j % 2 == 0 else (VXO, VXE)
            prev = put(Vv(f"v_cndmask_b32 v{VXOWN}, v{a_}, v{b_}, s[{S_PAR}:{S_PAR+1}]", wr=[f"v{VXOWN}"]), e - 4 if prev is None else prev.pos)
            prev = put(Vv(f"v_add_u32 v{VXOWN}, s{S_OWNX+j}, v{VXOWN}", wr=[f"v{VXOWN}"]), prev.pos)
            assert prev.pos > defpos.get(f"s[{S_PAR}:{S_PAR+1}]", 0) + 1
        rd = put(I(f"ds_read_b128 {rng('v',d+4,4)}, {adr}", "D", rd=[adr.split()[0]], wr=regs('v',d+4,4)), e, 26*12 - 2, after=[(prev, 1)] if prev else [])
        prev = rd; rds.append((rd, d)); bars[12].rd += regs('v', d+4, 4)
    for rd, d in rds:
        last = None
        for q in range(4):
            for h in range(2):
                txt = f"v_lshlrev_b32 v{d+2*q}, 16, v{d+4+q}" if h == 0 else f"v_and_b32 v{d+2*q+1}, s{SMASK}, v{d+4+q}"
                nb = rd.pos + 8
                last = put(Vv(txt, rd=[f"v{d+4+q}"], wr=[f"v{d+2*q+h}"]), nb, after=[(last, 0)] if last else [])
                unp[d] = last
    wr = []
    def ep(D0, D1, x0, e0, dst, adr, tag):
        f = []
        for e in range(8):
            a = (D0 + e) if e < 4 else (D1 + e - 4)
            if cfg.mul0:
                ee = max(e0[e // 4] + 3, unp[x0].pos + 1)
                probe = Vv("x"); q = ee
                while not G0.fits(q, probe): q += 1
                if cfg.pk0 and e % 2 == 0 and q >= N0:
                    f.append(put(Vv(f"v_pk_mul_f32 v[{a}:{a+1}], v[{x0+e}:{x0+e+1}], v[{a}:{a+1}]", rd=[f"v{a}", f"v{a+1}", f"v{x0+e}", f"v{x0+e+1}"], wr=[f"v{a}", f"v{a+1}"]), ee)); skip = True
                elif e % 2 == 1 and skip: skip = False
                else:
                    f.append(put(Vv(f"v_mul_f32 v{a}, v{x0+e}, v{a}", rd=[f"v{a}", f"v{x0+e}"], wr=[f"v{a}"]), ee)); skip = False
                continue
            f.append(put(Vv(f"v_fma_f32 v{a}, v{x0+e}, v{a}, v{x0+e}", rd=[f"v{a}", f"v{x0+e}"], wr=[f"v{a}"]), e0[e // 4] + 3, after=[(unp[x0], 1)]))
        last = None
        for q in range(4):
            a = (D0 + 2*q) if q < 2 else (D1 + 2*q - 4)
            c = Vv(f"v_cvt_pk_bf16_f32 v{dst+q}, v{a}, v{a+1}", rd=[f"v{a}", f"v{a+1}"], wr=[f"v{dst+q}"])
            if tag: c.name = ({}, tag)
            last = put(c, bt_last.pos + 1 if dst == TT else 0, after=[(x, 0) for x in f] + ([(last, 0)] if last else []))
        wr.append(put(I(f"ds_write_b128 {adr[0]}, {rng('v',dst,4)} offset:{adr[1]}", "X", rd=regs('v',dst,4), wr=["Lx1"]), 0, after=[(last, 1)]))
    ep(XS, XS+4, X0S, (acc_done[(6,4)], acc_done[(7,4)]), TT, (f"v{VS}", 0), None)
    for j in range(3):
        for r in (3, 2, 1, 0):
            ep(ACC0(2*j, r), ACC0(2*j+1, r), X0F(j, r, 0), (acc_done[(2*j, r)], acc_done[(2*j+1, r)]), XV(j, r), (f"v{VRD[0]}", (j*4+r)*1024), ('X', 1, (0, j), r))
    pl2 = put(I(f"global_load_dword v{VPOLLD}, v{VPOLL}, s[12:13] offset:128 sc1", "G", wr=[f"v{VPOLLD}"]), N0)
    assert min(x.pos for x in wl if x.kind == "B") >= max(26*12, bt_last.pos + 1)
    L0 = []
    lastg = max(p for p in range(G0.n) if G0.g[p])
    for p in range(lastg + 1):
        if p < N0: L0.append(M0[p])
        elif p == N0:
            L0.append(R("s_nop 3"))
            if cfg.st2: stamp(L0)
        if cfg.stamp and p < N0 and p % 26 == 0 and (p // 26) in cfg.stamp_steps: stamp(L0)
        if cfg.diag and cfg.diag[0] == 'step' and p == 26*cfg.diag[2]: L0.append(R("s_memrealtime s[92:93]\ns_waitcnt lgkmcnt(0)"))
        L0.append(slot1[p] if p in slot1 else Wait())
        L0 += G0.ordered(p)
    stamp(L0)
    L0.append(Wait()); L0.append(I("s_barrier", "BAR", rd=["Lx1"]))
    if cfg.st2: stamp(L0)
    L0 += rest
    def rdx(slot, r):
        p, b = xreg(slot, r)
        if slot == 12: txt = f"ds_read_b128 {rng(p,b,4)}, v{VRD12} offset:{r*1024}"
        else: txt = f"ds_read_b128 {rng(p,b,4)}, v{VRD[slot[0]]} offset:{(slot[1]*4+r)*1024}"
        ins = I(txt, "D", wr=regs(p,b,4)); ins.name = ({}, ('X', 1, slot, r)); return ins
    oth = []
    for x in body:
        if x.kind == "M" and x.layer == 1 and x.pos < 52:
            tg = [v for v in x.name[0].values() if v[0] == 'X'][0]
            if tg[2] == 12 or tg[2][0] != 0: oth.append(rdx(tg[2], tg[3]))
    for _ in range(cfg.first_reads): L0.append(oth.pop(0))
    L0.append(Wait())
    nb = []
    for k, x in enumerate(body):
        nb.append(x)
        if isinstance(x, Wait) and x.layer == 1:
            extra = []
            if oth: extra.append(oth.pop(0))
            if x.pos == cfg.chk2 + 1:
                extra.append(Vv(f"v_cmp_gt_u32 vcc, 84, v{VPOLLD}", rd=[f"v{VPOLLD}"]))
            if x.pos == cfg.chk2 + 4:
                extra.append(R("s_cbranch_vccnz L_wait2\nL_ok2:"))
            for e in extra: e.layer, e.pos = x.layer, x.pos
            nb += extra
    body = nb
    if cfg.tstore: body = transpose_stores(body, cfg)
    full = S + L0 + body
    insert_waits(full)
    init = {f"s{SOWN}": ('s',1,0), f"s{SOWN12}": ('s',1,0), f"s{STS}": ('s',1,'S'), f"s{SSPEC}": ('s',1), f"v{VBIAS}": ('vb',1)}
    i0 = len(S) + len(L0)
    fix = R(""); fix.wr = regs('v', XS, 8); fix.name = ({}, ('XS', 1))
    check_tags(full[:i0] + [fix] + full[i0:], init)
    SPLIT = cfg.split
    segs = {}
    for x in body: segs.setdefault(min(x.layer + (1 if x.pos >= SPLIT else 0), cfg.nlayers), []).append(x)
    loop = [segs[k] for k in range(2, cfg.nlayers)]
    for sg in loop[1:]:
        assert len(sg) == len(loop[0]) and all(a.text == b.text and a.kind == b.kind for a, b in zip(sg, loop[0]))
    for tup in zip(*loop):
        if isinstance(tup[0], Wait):
            vm = [w.vmn for w in tup if w.vmn is not None]; lg = [w.lgn for w in tup if w.lgn is not None]
            for w in tup:
                w.vmn = min(vm) if vm else None; w.lgn = min(lg) if lg else None
    verify_waits(full)
    fin = segs[cfg.nlayers]
    errs = check_hazards(full)
    assert not errs, errs
    out = [f".globl {KN}\n.p2align 8\n.type {KN},@function\n{KN}:"]
    out += render(S) + render(L0) + render(segs[1])
    if cfg.diag: out.append("s_memrealtime s[64:65]\ns_waitcnt lgkmcnt(0)")
    if cfg.loopalign: out.append(".p2align 6")
    out.append("L_loop:")
    if cfg.stamp:
        out.append(f"{TM} s[64:65]\ns_waitcnt lgkmcnt(0)\ns_sub_u32 s64, s64, s{T0R}\ns_sub_u32 m0, {nst[0]+3}, s{SCNT}\ns_nop 0\nv_writelane_b32 v0, s64, m0")
        nst[0] += 4
    out += render(loop[0])
    out.append(f"s_sub_u32 s{SCNT}, s{SCNT}, 1\ns_cbranch_scc0 L_loop")
    if cfg.stamp:
        t = []; stamp(t); out += render(t)
    fr = render(fin)
    if cfg.abl == 'nostore': fr = [t for t in fr if not t.startswith("global_store")]
    if cfg.abl == 'laststore':
        idx = [i for i, t in enumerate(fr) if t.startswith("global_store")][:-4]
        fr = [t for i, t in enumerate(fr) if i not in idx]
    if cfg.abl == 'quadstore':
        fr = [f"v_lshrrev_b32 v{VOUT}, 6, v{VL16}\nv_mul_u32_u24 v{VOUT}, 832, v{VOUT}\nv_and_b32 v{VOUT12}, 48, v{VL16}\nv_add_u32 v{VOUT}, v{VOUT}, v{VOUT12}\ns_mul_i32 s42, s16, 13312\ns_add_u32 s42, s42, 768\nv_add_u32 v{VOUT12}, s42, v{VOUT}\ns_mul_i32 s42, s16, 192\nv_add_u32 v{VOUT}, s42, v{VOUT}"] + fr
    out += fr
    if cfg.stamp:
        out.append("s_memtime s[66:67]\ns_waitcnt vmcnt(0)\ns_memtime s[68:69]\ns_memrealtime s[70:71]\ns_waitcnt lgkmcnt(0)")
        out.append("s_sub_u32 s66, s66, s60\ns_sub_u32 s68, s68, s60")
        out.append(f"v_writelane_b32 v0, s{S_TRY}, 0\nv_writelane_b32 v0, s66, 1\nv_writelane_b32 v0, s68, 2\nv_writelane_b32 v0, s62, 3\nv_writelane_b32 v0, s70, 4")
        out.append(f"s_lshl_b32 s42, s2, 2\ns_add_u32 s42, s42, s16\ns_lshl_b32 s42, s42, 7\ns_add_u32 s42, s42, {4<<20}")
        out.append(f"v_lshrrev_b32 v9, 2, v{VL16}\nv_add_u32 v9, s42, v9\ns_mov_b64 exec, 0xffffffff\nglobal_store_dword v9, v0, s[14:15]")
    if cfg.diag:
        kind, K = cfg.diag[:2]
        out.append("s_waitcnt vmcnt(0)\ns_memrealtime s[66:67]\ns_waitcnt lgkmcnt(0)")
        if kind == 'total': out.append("s_sub_u32 s68, s66, s62")
        elif kind == 'l0': out.append("s_sub_u32 s68, s64, s62")
        elif kind == 'main': out.append("s_sub_u32 s68, s66, s64")
        elif kind == 'spin': out.append("s_mul_i32 s68, s90, 100")
        elif kind == 'step': out.append("s_sub_u32 s68, s92, s62")
        elif kind in ('atom', 'spin1', 'spin2'): out.append("s_mov_b32 s68, s90")
        elif kind in ('skew',):
            out.append("s_not_b32 s69, s62\nv_mov_b32 v4, 32\nv_mov_b32 v5, s69\ns_mov_b64 exec, 1\nglobal_atomic_umax v4, v5, s[12:13] sc1\ns_waitcnt vmcnt(0)\ns_sleep 127\ns_sleep 127\ns_sleep 127\ns_sleep 127\nglobal_load_dword v6, v4, s[12:13] sc1\ns_waitcnt vmcnt(0)\nv_readfirstlane_b32 s69, v6\ns_not_b32 s69, s69\ns_sub_u32 s68, s62, s69\ns_memrealtime s[66:67]\ns_waitcnt lgkmcnt(0)")
        if cfg.diag_wg: out.append(f"s_cmp_ge_u32 s2, {cfg.diag_wg[0]}\ns_cselect_b32 s68, s68, 0\ns_cmp_lt_u32 s2, {cfg.diag_wg[1]}\ns_cselect_b32 s68, s68, 0")
        out.append(f"s_min_u32 s68, s68, 10000\ns_mul_i32 s68, s68, {K}")
        out.append("L_dspin:\ns_sleep 2\ns_memrealtime s[70:71]\ns_waitcnt lgkmcnt(0)\ns_sub_u32 s69, s70, s66\ns_cmp_lt_u32 s69, s68\ns_cbranch_scc1 L_dspin")
    out.append("s_endpgm")
    pre_a = post_a = ""
    if cfg.diag and cfg.diag[0] == 'atom':
        pre_a = "s_waitcnt vmcnt(0)\ns_memrealtime s[92:93]\ns_waitcnt lgkmcnt(0)\n"
        post_a = "s_waitcnt vmcnt(0)\ns_memrealtime s[94:95]\ns_waitcnt lgkmcnt(0)\ns_sub_u32 s90, s94, s92\n"
    for t in sig_steps:
        out.append(f"L_sig{t}:\ns_mov_b64 exec, 1\n{pre_a}global_atomic_add v{BIAS}, v{BIAS+1}, s[12:13] sc1\n{post_a}s_mov_b64 exec, -1\ns_branch L_sigret{t}")
    for k, cmp_ in ((1, f"v_cmp_gt_u32 vcc, 22, v{VPOLLD}"), (2, f"v_cmp_gt_u32 vcc, 84, v{VPOLLD}")):
        out.append(f"""L_wait{k}:
s_mov_b32 s{S_RET}, {k}
s_mov_b32 s{S_TRY}, {cfg.tries}
L_spin{k}:
s_sub_u32 s{S_TRY}, s{S_TRY}, 1
s_cbranch_scc1 L_self
{"s_add_u32 s90, s90, 1" if cfg.diag and cfg.diag[0] == 'spin' else ("s_add_u32 s90, s90, 100" if cfg.diag and cfg.diag[0] == f'spin{k}' else "")}
s_sleep {cfg.psleep}
global_load_dword v{VPOLLD}, v{VPOLL}, s[12:13] offset:{128*(k-1)} sc1
s_waitcnt vmcnt(0)
{cmp_}
s_nop 4
s_cbranch_vccnz L_spin{k}
s_branch L_ok{k}""")
    fb = [f"L_self:\ns_cmp_eq_u32 s{S_RET}, 1\ns_cbranch_scc0 L_self2"] + [f"v_accvgpr_write_b32 a{112+i}, v{TT+i}" for i in range(16)]
    fb += [f"L_self2:\ns_mov_b32 s{SRD_US+2}, {6*LAYER_B}\ns_mov_b32 s{SRD_UD+2}, {WOFF + 6*LAYER_B}\ns_mov_b32 s17, 0\nL_selfloop:", unit_addr(17)]
    fb += [unit_load(e, TT).text for e in range(8)] + ["s_waitcnt vmcnt(0)"]
    fb += [unit_perm(p, h, TT).text for h in range(2) for p in range(4)] + [unit_store(h, TT).text for h in range(2)]
    fb.append(f"s_waitcnt vmcnt(0)\ns_add_u32 s17, s17, 1\ns_cmp_lt_u32 s17, {NUNIT}\ns_cbranch_scc1 L_selfloop")
    fb.append(f"s_cmp_eq_u32 s{S_RET}, 1\ns_cbranch_scc0 L_ok2")
    fb += [f"v_accvgpr_read_b32 v{TT+i}, a{112+i}" for i in range(16)] + ["s_branch L_ok1"]
    out += fb
    out.append("L_end:\ns_endpgm")
    info.update(sig_t=sig_t, l0_last=lastg, x_issue=x_issue)
    return "\n".join(out), info

class C2(Cfg):
    stamp = False
    stamp_steps = tuple(range(1, 13))
    codepf = True
    xflag = ""
    stflag = " nt"
    split = 54
    loopalign = True
    seq = ['karg','b0','x0','x1','w0','sb','u','sa','cq','x2','w1','cu','rd0','x3','w2','x4','w3','us']
    pfa = (0, 5)
    wsplit = 2

    dma_pos = [1, 4, 7, 10, 13, 16, 19]
    x_pos = [21, 23]
    late = 22
    diag = None
    diag_wg = None
    psleep = 8
    st_pos = [160,190,220,250,262,274,286,298,310]
    tstore = True
    ts_lag = 6
    stflags = None
    mul0 = True
    pk0 = True
    st2 = False
    abl = None
    bt_from = 8
    bl_from = 26 + 20
    lag_bl = 3
    def_from = 0
    sig_pos = 2
    dma_pos_x = [1, 4, 7, 10, 13, 16, 19]
    ns = 4
    sig_step = 3
    lag_x = 3
    lag_st = 3
    lag_poll = 2
    pf1_off = 16
    nB = 5
    codepf_share = True
    unit_step = 1
    unpack_from = 26*4
    poll_step = 6
    wl_from = 26*9 + 1
    wl_step = 4
    first_reads = 8
    chk2 = 40
    tries = 20000

HEAD = """; DCN-v2 cross network, 6 layers, B=16384, D=416, bf16 (written out by my own scheduling script)
; Kernarg: x0, ws, bs, out, debug, workspace
"""
def gen(cfg):
    mk, info = main_kernel(cfg)
    txt = HEAD + f"; @launch grid=(256,1,1) block=(256,1,1) lds={LDS_BYTES}\n"
    txt += '.amdgcn_target "amdgcn-amd-amdhsa--gfx950"\n.text\n' + mk + "\n"
    txt += '.section .rodata,"a"\n.p2align 6\n' + kd(KN, 512, 256)
    return txt, info

if __name__ == "__main__":
    cfg = C2()
    for a in sys.argv[2:]:
        k, v = a.split("=", 1); assert hasattr(cfg, k), k; setattr(cfg, k, eval(v))
    txt, info = gen(cfg)
    open(sys.argv[1], "w").write(txt)
    print(info, len(txt.splitlines()), "lines")
```

```python
import sys
from fast import *

KN = "standalone__dcn_v2_cross__recsys_kernel"
import os
WOFF = int(os.environ.get('WOFF', 65536))
L_RING = 53248
BLK = 6664
STG = 4*BLK
L_B0 = L_RING + 4*STG
LDS_BYTES = L_B0 + 1024
def slot(t): return (t + 3) % 4
AORD = [0, 6, 7, 1, 8, 2, 9, 3, 10, 4, 11, 5, 12]
NUNIT = 845

for u in range(1024): assert (u*24819) >> 22 == u // 169
for u in range(169): assert (u*5042) >> 16 == u // 13
for u in range(64): assert (u*21846) >> 16 == u // 3

VL16, VL16B, VLW, VTR, VTR12, VUS, VPOLL, VPOLLD = 2, 3, 251, 252, 253, 254, 255, 1
def WB(b, t): return b*32 + t*4
def XB(b, r): return 64 + b*20 + r*4
def ACC0(t, r):
    if t >= 6: return XS + 4*(t-6)
    j, h = t // 2, t % 2
    if h == 0: return XV(j, r)
    return [ACC(0), X12(0), HOLD(0)][j] + 4*r
VXE, VXO, VXEW, VXOW, VXOWN, VXD = BIAS+2, BIAS+3, VLW, VOUT, VOUT12, SPEC
VTRB, VTR12B = SPEC+1, SPEC+2
CQ = 68
BT_A0, BT_SC = SPEC+3, 163
CRAW = 100
S_XM0, S_RM0 = 46, 47
SRD_US, SRD_UD, S_US0, S_US1, S_UD0, S_UD1 = 48, 52, 56, 57, 58, 59
S_SEL0, S_SEL1, SRD_B, S_PC = 72, 73, 76, 80
S_RET, S_TRY, S_SIG = 74, 75, 82
S_OWNX, S_PAR = 84, 88

def kd(name, nv, acc, ns=102):
    return f""".amdhsa_kernel {name}
  .amdhsa_next_free_vgpr {nv}
  .amdhsa_next_free_sgpr {ns}
  .amdhsa_accum_offset {acc}
  .amdhsa_group_segment_fixed_size 0
  .amdhsa_kernarg_size 48
  .amdhsa_user_sgpr_count 2
  .amdhsa_user_sgpr_kernarg_segment_ptr 1
  .amdhsa_system_sgpr_workgroup_id_x 1
  .amdhsa_float_denorm_mode_32 3
.end_amdhsa_kernel
"""
def R(txt): return I(txt, "S")
def Vv(txt, rd=(), wr=()): return I(txt, "V", rd=rd, wr=wr)

def unit_addr(ureg):
    return (f"s_mul_i32 s42, s{ureg}, 24819\ns_lshr_b32 s42, s42, 22\n"
            f"s_mul_i32 s43, s42, 169\ns_sub_u32 s43, s{ureg}, s43\n"
            f"s_mul_i32 s44, s43, 5042\ns_lshr_b32 s44, s44, 16\n"
            f"s_mul_i32 s45, s44, 13\ns_sub_u32 s45, s43, s45\n"
            f"s_add_u32 s42, s42, 1\ns_mul_i32 s42, s42, {LAYER_B}\n"
            f"s_mul_i32 s{S_US0}, s44, 26624\ns_add_u32 s{S_US0}, s{S_US0}, s42\ns_lshl_b32 s43, s45, 6\ns_add_u32 s{S_US0}, s{S_US0}, s43\n"
            f"s_add_u32 s{S_US1}, s{S_US0}, 3328\n"
            f"s_mul_i32 s{S_UD0}, s45, 26624\ns_add_u32 s{S_UD0}, s{S_UD0}, s42\ns_lshl_b32 s43, s44, 10\ns_add_u32 s{S_UD0}, s{S_UD0}, s43\n"
            f"s_add_u32 s{S_UD0}, s{S_UD0}, {WOFF}\ns_add_u32 s{S_UD1}, s{S_UD0}, {TILE_B}")
def unit_load(e, base):
    return I(f"buffer_load_dword v{base+e}, v{VUS}, s[{SRD_US}:{SRD_US+3}], s{S_US0 if e < 4 else S_US1} offen offset:{(e%4)*832}", "B", wr=[f"v{base+e}"])
def unit_perm(p, h, base):
    return Vv(f"v_perm_b32 v{base+8+4*h+p}, v{base+2*p+1}, v{base+2*p}, s{S_SEL1 if h else S_SEL0}", rd=[f"v{base+2*p+1}", f"v{base+2*p}"], wr=[f"v{base+8+4*h+p}"])
def unit_store(h, base):
    return I(f"buffer_store_dwordx4 {rng('v',base+8+4*h,4)}, v{VL16}, s[{SRD_UD}:{SRD_UD+3}], s{S_UD1 if h else S_UD0} offen sc1", "T", rd=regs('v',base+8+4*h,4), wr=["Mw"])


VWS, VWS12 = VTR, VTR12
def transpose_stores(body, cfg):
    NL = cfg.nlayers
    key = lambda x: (x.layer - (NL-1))*NM + x.pos
    head = [x for x in body if key(x) < cfg.split]
    tail = [x for x in body if key(x) >= cfg.split]
    G = Gaps(NM + 200)
    mf = {}
    moved = []
    stores = []
    for x in tail:
        p = key(x)
        if x.kind == "M": mf[p] = x
        elif isinstance(x, Wait): pass
        elif x.kind == "T": stores.append((p, x))
        elif x.name and x.name[1] and x.name[1][0] == 'U' and (x.name[1][2] % 2 == 0 or x.name[1][2] == 1): moved.append((p, x))
        else: x.pos = p; G.g[p].append(x)
    fpos = {x.name[1][1:]: x.pos for g in G.g for x in g if x.name and x.name[1] and x.name[1][0] == 'F'}
    prev = None
    for txt in [f"v_bfe_u32 v{VLW}, v{VL16}, 5, 2", f"v_lshrrev_b32 v{VWS}, 8, v{VL16}", f"v_xor_b32 v{VLW}, v{VLW}, v{VWS}",
                f"v_and_b32 v{VWS}, 0xf0, v{VL16}", f"v_lshlrev_b32 v{VWS}, 2, v{VWS}", f"v_lshl_add_u32 v{VWS}, v{VLW}, 4, v{VWS}",
                f"s_add_u32 s42, s{S_XM0}, {L_X12}", f"v_add_u32 v{VWS12}, s42, v{VWS}", f"s_mul_i32 s42, s16, {GSTR}", f"v_add_u32 v{VWS}, s42, v{VWS}",
                f"v_bfe_u32 v{VLW}, v{VL16}, 7, 2", f"v_bfe_u32 v{VOUT}, v{VL16}, 4, 2", f"v_xor_b32 v{VLW}, v{VLW}, v{VOUT}",
                f"v_lshrrev_b32 v{VOUT}, 6, v{VL16}", f"v_mul_u32_u24 v{VOUT}, 832, v{VOUT}", f"v_lshl_add_u32 v{VOUT}, v{VLW}, 4, v{VOUT}",
                f"s_mul_i32 s42, s16, 13312", f"s_add_u32 s42, s42, 768", f"v_add_u32 v{VOUT12}, s42, v{VOUT}", f"s_mul_i32 s42, s16, 192", f"v_add_u32 v{VOUT}, s42, v{VOUT}"]:
        prev = G.place(Vv(txt) if txt[0] == 'v' else R(txt), cfg.split + 4 if prev is None else prev.pos + 1)
    free = {}; lastdef = 0
    for p, x in stores: G.g[p].append(I('', 'X'))
    for n, (p, x) in enumerate(stores):
        d = int(x.rd[0][1:]); shared = d == TT + 12
        assert p > prev.pos
        if shared: wa, ra = f"v{VWS12}", f"v{VS}"; wo = ""
        else:
            j = int(x.text.split("offset:")[1].split()[0]) // 64; r = (d - HOLD(0)) // 4
            wa, wo, ra = f"v{VWS}", f" offset:{(j*4+r)*1024}", f"v{VRD[0]} offset:{(j*4+r)*1024}"
        w = I(f"ds_write_b128 {wa}, {rng('v',d,4)}{wo}", "X", rd=x.rd); w.name = x.name; w.pos = p; G.g[p] = [y for y in G.g[p] if y.text] + [w]
        if cfg.st_pos and n < len(cfg.st_pos) and cfg.st_pos[n]:
            src = x.rd; t_ = SPEC
            x.text = x.text.replace(rng('v',d,4), rng('v',t_,4)); x.rd = regs('v',t_,4)
            rd = I(f"ds_read_b128 {rng('v',t_,4)}, {ra}", "D", wr=x.rd); rd.name = ({}, ('TR', n))
            G.place(rd, max(p + 1, cfg.st_pos[n] - cfg.ts_lag, lastdef + 1))
            x.name = ({q: ('TR', n) for q in x.rd}, None)
            G.place(x, rd.pos + cfg.ts_lag); lastdef = x.pos
            for q in src: free.setdefault(q, []).append((p, p))
            continue
        rd = I(f"ds_read_b128 {rng('v',d,4)}, {ra}", "D", wr=x.rd); rd.name = ({}, ('TR', n))
        G.place(rd, p + 1)
        x.name = ({q: ('TR', n) for q in x.rd}, None)
        fl = cfg.stflags[min(n, len(cfg.stflags)-1)] if cfg.stflags else None
        if fl is not None: x.text = x.text.replace(cfg.stflag, fl)
        G.place(x, rd.pos + cfg.ts_lag)
        for q in x.rd: free.setdefault(q, []).append((p, x.pos))
    for p, x in moved:
        tg = x.name[1]; dl = fpos[tg[1:]] - 1
        e = max([p] + [b + 1 for a, b in free.get(x.wr[0], []) if a < dl])
        G.place(x, e, dl)
    out = []
    for p in range(cfg.split, G.n):
        lst = G.ordered(p)
        if p in mf: out.append(mf[p])
        if p in mf or lst:
            w = Wait(); out.append(w); out += lst
            for y in [w] + lst: y.layer, y.pos = NL - 1 + p // NM, p % NM
    return head + out

def main_kernel(cfg):
    mf, G, items, info = build_schedule(cfg)
    pre, body = unroll(mf, G, cfg, 1)
    S = []
    A = lambda t: S.append(R(t))
    nst = [5]
    TM, T0R = ("s_memrealtime", 62) if cfg.stamp == 'rt' else ("s_memtime", 60)
    def stamp(lst=None):
        if not cfg.stamp: return
        t = R(f"{TM} s[64:65]\ns_waitcnt lgkmcnt(0)\ns_sub_u32 s64, s64, s{T0R}\nv_writelane_b32 v0, s64, {nst[0]}")
        nst[0] += 1
        (S if lst is None else lst).append(t)
    if cfg.stamp: A(f"s_memtime s[60:61]\ns_memrealtime s[62:63]\ns_mov_b32 s{S_TRY}, 0")
    if cfg.diag: A(f"s_memrealtime s[62:63]\ns_mov_b32 s{S_TRY}, {cfg.tries}\ns_mov_b32 s90, 0")
    A("s_cmp_ge_u32 s2, 256\ns_cbranch_scc1 L_end")
    A("s_load_dwordx8 s[4:11], s[0:1], 0\ns_load_dwordx4 s[12:15], s[0:1], 32")
    if cfg.codepf:
        A(f"s_getpc_b64 s[{S_PC}:{S_PC+1}]\nL_pc:")
        if cfg.codepf_share:
            A("s_lshr_b32 s42, s2, 3\ns_and_b32 s42, s42, 31\nv_and_b32 v4, 0xe0, v0\nv_add_u32 v4, s42, v4\nv_lshlrev_b32 v4, 7, v4")
        else: A("v_lshlrev_b32 v4, 7, v0")
        A("v_min_u32 v4, L_end-L_pc, v4")
        S.append(I(f"global_load_dword v{VPFD}, v4, s[{S_PC}:{S_PC+1}]", "G", wr=[f"v{VPFD}"]))
    A("v_lshrrev_b32 v1, 6, v0\nv_and_b32 v0, 63, v0\ns_nop 0\nv_readfirstlane_b32 s16, v1")
    A(f"v_lshlrev_b32 v{VL16}, 4, v0\nv_add_u32 v{VL16B}, 4096, v{VL16}")
    A("v_and_b32 v5, 15, v0\nv_lshrrev_b32 v6, 4, v0\nv_lshlrev_b32 v1, 4, v6\nv_bfe_u32 v8, v0, 2, 2\nv_and_b32 v12, 48, v2")
    A(f"s_mul_i32 s43, s16, 13312\nv_lshrrev_b32 v9, 3, v0\nv_mul_u32_u24 v9, 1664, v9\nv_and_b32 v10, 32, v0\nv_and_b32 v11, 0x70, v{VL16}\nv_xor_b32 v10, v11, v10\nv_add3_u32 v{VXD}, v9, v10, s43")
    A("s_mul_i32 s42, s16, 3\nv_add_u32 v13, s42, v6\nv_cmp_eq_u32 vcc, 3, v6\nv_mov_b32 v14, 12\nv_lshlrev_b32 v15, 2, v5\nv_cndmask_b32 v13, v13, v14, vcc\nv_lshl_add_u32 v14, v13, 6, v15")
    A(f"s_lshl_b32 s96, s16, 8\ns_add_u32 s96, s96, {L_B0}")
    A(f"s_lshl_b32 s{S_XM0}, s16, 10\ns_mul_i32 s{S_RM0}, s16, {BLK}\ns_add_u32 s{S_RM0}, s{S_RM0}, {L_RING}")
    A("s_mul_i32 s31, s2, 53248\ns_mul_i32 s83, s16, 6656")
    def setup_pf():
      A(f"s_lshr_b32 s44, s2, 3\ns_and_b32 s44, s44, 31\ns_lshl_b32 s44, s44, 2\ns_add_u32 s44, s44, s16")
      A(f"v_lshrrev_b32 v{VPF}, 4, v{VL16}\nv_mul_u32_u24 v{VPF}, 21846, v{VPF}\nv_lshrrev_b32 v{VPF}, 16, v{VPF}\nv_lshl_add_u32 v{VPF}, v{VPF}, 7, s44\nv_min_u32 v{VPF}, 2703, v{VPF}\nv_lshlrev_b32 v{VPF}, 7, v{VPF}")
    early_pf = any(e.startswith('pf') for e in cfg.seq)
    if early_pf: setup_pf()
    sigsetup = R('')
    def setup_a():
        A("s_mul_i32 s42, s16, 192")
        A(f"v_mul_u32_u24 v10, {BLK}, v6\nv_mul_u32_u24 v11, 832, v8\nv_add3_u32 v10, v10, v11, v12")
        A(f"s_add_u32 s42, s42, {L_RING}\nv_add_u32 v{VTR}, s42, v10\nv_add_u32 v{VTR12}, {L_RING+768}, v10")
        A(f"v_add_u32 v{VTRB}, {2*STG}, v{VTR}\nv_add_u32 v{VTR12B}, {2*STG}, v{VTR12}")
        A(f"v_lshlrev_b32 v34, 2, v5\nv_and_b32 v34, 32, v34\nv_xor_b32 v34, v34, v1\nv_lshl_add_u32 v34, v5, 6, v34\nv_and_b32 v35, 1, v5")
        A(f"v_mul_u32_u24 v36, 24576, v35\nv_add_u32 v{VXE}, v34, v36\nv_xor_b32 v34, 64, v34\nv_mul_u32_u24 v36, 28672, v35\nv_add_u32 v{VXO}, v34, v36")
        A(f"v_add_u32 v{VXEW}, s{S_XM0}, v{VXE}\nv_add_u32 v{VXOW}, s{S_XM0}, v{VXO}")
        A(f"v_add_u32 v{VBIAS}, s96, v1\ns_mov_b32 s{SMASK}, 0xffff0000")
    def setup_b():
        A(f"v_mul_u32_u24 v{VUS}, 6656, v6\nv_lshl_add_u32 v{VUS}, v5, 2, v{VUS}")
        A(f"s_lshl_b32 s17, s2, 2\ns_add_u32 s17, s17, s16")
        A(unit_addr(17))
        A(f"s_cmp_lt_u32 s17, {NUNIT}\ns_cselect_b32 s{SRD_US+2}, {0 if cfg.abl == 'nould' else 6*LAYER_B}, 0\ns_cselect_b32 s{SRD_UD+2}, {0 if cfg.abl in ('nould', 'noust') else WOFF + 6*LAYER_B}, 0")
        A(f"s_mov_b32 s{SRD_US+3}, 0x20000\ns_mov_b32 s{SRD_UD+3}, 0x20000\ns_mov_b32 s{S_SEL0}, 0x05040100\ns_mov_b32 s{S_SEL1}, 0x07060302")
    def setup_c():
        A(f"s_mul_i32 s97, s16, 3\ns_mul_i32 s99, s16, {GSTR}\ns_add_u32 s99, s99, {L_BIAS}\ns_lshr_b32 s98, s16, 1\ns_lshl_b32 s98, s98, 6")
        S.append(sigsetup)
        if not early_pf: setup_pf()
        for d in range(4):
            A(f"s_add_u32 s42, s16, {d}\ns_and_b32 s42, s42, 3\ns_mul_i32 s44, s42, 3072\ns_lshl_b32 s43, s44, 2")
            A(f"v_add_u32 v{VRD[d]}, s43, v{VL16}\nv_add_u32 v{VW[d]}, s44, v{VL16}")
        A(f"v_add_u32 v{VRD12}, {L_X12}, v{VL16}\nv_add_u32 v{VS}, s{S_XM0}, v{VRD12}")
        A(f"s_mov_b32 s{SCNT}, {cfg.nlayers-3}\nv_and_b32 v{VPOLL}, 16, v{VL16}\nv_lshlrev_b32 v{VPOLL}, 2, v{VPOLL}")
        for j in range(3):
            A(f"s_add_u32 s42, s97, {j}\ns_lshr_b32 s42, s42, 1\ns_lshl_b32 s{S_OWNX+j}, s42, 12")
        A(f"s_bitcmp1_b32 s16, 0\ns_cselect_b64 s[{S_PAR}:{S_PAR+1}], -1, 0")
    def setup_p():
        A(f"s_add_u32 s{SPF}, s14, {WOFF + LAYER_B}\ns_addc_u32 s{SPF+1}, s15, 0")
        A(f"s_mul_i32 s42, s16, {6*TILE_B}\ns_add_u32 s{SOWN}, s{SPF}, s42\ns_addc_u32 s{SOWN+1}, s{SPF+1}, 0")
        A(f"s_sub_u32 s{SOWN12}, s{SOWN}, {L_X12-12288}\ns_subb_u32 s{SOWN12+1}, s{SOWN+1}, 0")
        A(f"s_lshr_b32 s42, s16, 1\ns_add_u32 s42, s42, 24\ns_mul_i32 s42, s42, {TILE_B}")
        A(f"s_add_u32 s{STS}, s{SPF}, s42\ns_addc_u32 s{STS+1}, s{SPF+1}, 0\ns_add_u32 s{SSPEC}, s42, {12288 + LAYER_B + WOFF - L_X12}")
        A(f"s_mov_b32 s{SRD}, s14\ns_mov_b32 s{SRD+1}, s15\ns_mov_b32 s{SRD+3}, 0x20000")
        A(f"s_and_b32 s42, s16, 1\ns_cmp_eq_u32 s42, 0\ns_cselect_b32 s{SRD+2}, {WOFF + 6*LAYER_B}, 0")
        for r in range(4):
            A(f"s_add_u32 s42, s31, {r*13312}\ns_add_u32 s{SOUT(r)}, s10, s42\ns_addc_u32 s{SOUT(r)+1}, s11, 0")
    def do_karg():
        A("s_waitcnt lgkmcnt(0)")
        stamp()
        A(f"s_mov_b32 s{SRD_US}, s6\ns_mov_b32 s{SRD_US+1}, s7")
        A("s_add_u32 s4, s4, s31\ns_addc_u32 s5, s5, 0")
        A("s_add_u32 s6, s6, s83\ns_addc_u32 s7, s7, 0")
    def do_cq():
        S.append(Wait())
        for u in range(4):
            S.append(I(f"ds_read_b128 {rng('v',CRAW+4*u,4)}, v{VBIAS} offset:{u*64}", "D", rd=["Lb0"], wr=regs('v',CRAW+4*u,4)))
    def do_cu():
        for u in range(4):
            S.append(Wait())
            for q in range(4):
                S.append(Vv(f"v_lshlrev_b32 v{CQ+8*u+2*q}, 16, v{CRAW+4*u+q}", rd=[f"v{CRAW+4*u+q}"], wr=[f"v{CQ+8*u+2*q}"]))
                S.append(Vv(f"v_and_b32 v{CQ+8*u+2*q+1}, s{SMASK}, v{CRAW+4*u+q}", rd=[f"v{CRAW+4*u+q}"], wr=[f"v{CQ+8*u+2*q+1}"]))
            if cfg.mul0:
                for q in range(4):
                    a = CQ+8*u+2*q
                    S.append(Vv(f"v_pk_add_f32 v[{a}:{a+1}], v[{a}:{a+1}], 1.0 op_sel_hi:[1,0]", rd=[f"v{a}", f"v{a+1}"], wr=[f"v{a}", f"v{a+1}"]))
    def xdma(s):
        o = AORD[s]*128
        return [R(f"s_add_u32 m0, s{S_XM0}, {AORD[s]*4096 - o}"),
                I(f"global_load_lds_dwordx4 v{VXD}, s[4:5] offset:{o}{cfg.xflag}", "G", wr=[f"Lxc{s}"])]
    def wdma(t, i):
        v = VL16 if i < 4 else VL16B
        txt = f"global_load_lds_dwordx4 v{v}, s[6:7] offset:{(i%4)*1024}"
        if i == 6: txt = "s_mov_b64 exec, 0xffffffff\n" + txt + "\ns_mov_b64 exec, -1"
        return I(txt, "G", wr=[f"Lw{t}"])
    def wm0(t, i): return R(f"s_add_u32 m0, s{S_RM0}, {slot(t)*STG + (4096 if i >= 4 else 0)}")
    def wadv(t):
        x = "s_add_u32 s6, s6, 26624\ns_addc_u32 s7, s7, 0"
        return R(x)
    def pro_x(s):
        a, b = xdma(s); S.extend([a, R("s_nop 0"), b])
    def pro_w(t, lo=0, hi=7):
        for i in range(lo, hi):
            if i in (lo, 4): S.extend([wm0(t, i), R("s_nop 0")])
            S.append(wdma(t, i))
        if hi == 7: S.append(wadv(t))
    def pf_w0(lo, hi):
        m = ((1 << min(3*hi, 64)) - 1) ^ ((1 << 3*lo) - 1)
        txt = f"global_load_dword v{VPFD}, v{VPF}, s[{SRD_US}:{SRD_US+1}]"
        if m != (1 << 64) - 1:
            txt = f"s_mov_b32 exec_lo, {hex(m & 0xffffffff)}\ns_mov_b32 exec_hi, {hex(m >> 32)}\n{txt}\ns_mov_b64 exec, -1"
        return I(txt, "G", wr=[f"v{VPFD}"])
    def pro_seq(seq):
        for e in seq:
            if e == 'pf': S.append(pf_w0(0, 22))
            elif e == 'pfa': S.append(pf_w0(*cfg.pfa))
            elif e == 'pfb': S.append(pf_w0(cfg.pfa[1], 22))
            elif e == 'u':
                A(f"s_mov_b32 s{SRD_UD}, s14\ns_mov_b32 s{SRD_UD+1}, s15")
                for k in range(8): S.append(unit_load(k, TT))
            elif e == 'us':
                S.append(Wait())
                S.extend([unit_perm(p, h, TT) for h in range(2) for p in range(4)] + [unit_store(h, TT) for h in range(2)])
            elif e == 'b0':
                A("s_mov_b32 m0, s96\ns_nop 0")
                S.append(I("global_load_lds_dword v14, s[8:9]", "G", wr=["Lb0"]))
            elif e == 'pb':
                A("s_lshr_b32 s42, s2, 3\ns_lshl_b32 s42, s42, 2\ns_add_u32 s42, s42, s16\ns_and_b32 s42, s42, 63\ns_min_u32 s42, s42, 38\ns_lshl_b32 s42, s42, 7\nv_mov_b32 v15, s42")
                S.append(I(f"global_load_dword v{VPFD}, v15, s[8:9]", "G", wr=[f"v{VPFD}"]))
            elif e == 'tw':
                A(f"v_and_b32 v15, 16, v{VL16}\nv_mul_u32_u24 v15, {(3<<20)//16}, v15\nv_add_u32 v15, {WOFF - 65536}, v15")
                S.append(I(f"global_load_dword v{VPFD}, v15, s[14:15]", "G", wr=[f"v{VPFD}"]))
            elif e == 'to':
                A(f"v_mov_b32 v15, s31")
                S.append(I(f"global_load_dword v{VPFD}, v15, s[10:11]", "G", wr=[f"v{VPFD}"]))
            elif e[0] == 'x': pro_x(int(e[1:]))
            elif e[0] == 'w' and ':' in e:
                t_, r_ = e[1:].split(':'); lo, hi = r_.split('-'); pro_w(int(t_), int(lo), int(hi))
            elif e[0] == 'w' and e[-1] == 'a': pro_w(int(e[1:-1]), 0, cfg.wsplit)
            elif e[0] == 'w' and e[-1] == 'b': pro_w(int(e[1:-1]), cfg.wsplit, 7)
            elif e[0] == 'w': pro_w(int(e[1:]))
            else: raise ValueError(e)
    def reads(t):
        b, sl = t % 2, slot(t)
        out = []
        def xr(r):
            d = XB(b, r)
            if r == 4: txt = f"v{VXOW if t % 2 else VXEW} offset:{(t//2)*4096}"
            else: txt = f"v{VXO if t % 2 else VXE} offset:{(t//2)*4096 + r*1024}"
            ins = I(f"ds_read_b128 {rng('a',d,4)}, {txt}", "D", rd=[txt.split()[0]], wr=regs('a',d,4)); ins.name = ({}, ('x0', t, r)); return ins
        def wr_(tt, p):
            d = WB(b, tt) + 2*p
            if tt >= 6: txt = f"v{VTR12B if sl >= 2 else VTR12} offset:{(sl%2)*STG + p*3328 + 8*(tt-6)}"
            else: txt = f"v{VTRB if sl >= 2 else VTR} offset:{(sl%2)*STG + p*3328 + (tt//2)*64 + 8*(tt%2)}"
            ins = I(f"ds_read_b64_tr_b16 {rng('a',d,2)}, {txt}", "D", wr=regs('a',d,2)); ins.name = ({}, ('w0', t, tt)); return ins
        out += [xr(4), wr_(6,0), wr_(6,1), wr_(7,0), wr_(7,1), wr_(0,0), wr_(0,1), xr(0), xr(1), xr(2), xr(3)]
        for tt in range(1, 6): out += [wr_(tt, 0), wr_(tt, 1)]
        return out
    def bar(t, extra=()):
        need = [f"Lw{t+1}"] + [f"Lxc{i}" for i in range(min(t+2, 12) + 1)] if t < 12 else []
        if t >= 0: need += [r for x in reads(t) for r in x.wr]
        return I("s_barrier", "BAR", rd=need + list(extra))
    for e in cfg.seq:
        if e in ('sa', 'sb', 'sc', 'sp'): dict(sa=setup_a, sb=setup_b, sc=setup_c, sp=setup_p)[e]()
        elif e == 'karg': do_karg()
        elif e == 'cq': do_cq()
        elif e == 'cu': do_cu()
        elif e.startswith('wait:'):
            S.append(Wait()); S.append(I("s_nop 0", "S", rd=[e[5:]])); stamp()
        elif e == 'st': stamp()
        elif e == 'rd0':
            S.append(Wait()); S.append(bar(-1)); stamp(); S.extend(reads(0))
        else: pro_seq([e])
    S.append(Wait()); S.append(bar(0))
    stamp()

    deferred = []
    for e in ('sc', 'sp'):
        if e not in cfg.seq:
            n0 = len(S); dict(sc=setup_c, sp=setup_p)[e](); deferred += S[n0:]; del S[n0:]
    N0 = 338
    NS = cfg.ns
    G0 = Gaps(N0 + 400)
    slot1 = {}
    M0 = []
    order = [(6, 4), (7, 4)]
    for tt in range(6): order += [(tt, r) for r in ([0,1,2,3] if tt % 2 == 0 else [3,2,1,0])]
    acc_done = {}
    for t in range(13):
        b = t % 2
        for (tt, r) in order:
            a = ACC0(tt, r); c = (CQ + 4*tt) if t == 0 else a
            ins = I(f"v_mfma_f32_16x16x32_bf16 {rng('v',a,4)}, {rng('a',WB(b,tt),4)}, {rng('a',XB(b,r),4)}, {rng('v',c,4)}", "M",
                    rd=regs('a',WB(b,tt),4)+regs('a',XB(b,r),4), wr=regs('v',a,4), srcc=regs('v',c,4))
            exp = {x: ('w0', t, tt) for x in regs('a',WB(b,tt),4)}; exp.update({x: ('x0', t, r) for x in regs('a',XB(b,r),4)})
            if t: exp.update({x: ('a0', tt, r) for x in regs('v',a,4)})
            ins.name = (exp, ('a0', tt, r))
            acc_done[(tt, r)] = len(M0)
            M0.append(ins)
    def put(ins, p, latest=None, after=()): return G0.place(ins, p, latest, after)
    def put1(ins, p):
        assert p not in slot1 and p % 26 != 25, p
        slot1[p] = ins; ins.pos = p
    def puts(ins, p, latest=None):
        lines = ins.text.split("\n")
        while any((p+i) in slot1 or (p+i) % 26 == 25 for i in range(len(lines))): p += 1
        for i, t in enumerate(lines):
            x = ins if i == len(lines) - 1 else R(t)
            x.text = t; put1(x, p + i)
        assert latest is None or ins.pos <= latest, (ins.text, ins.pos, latest)
        return ins
    wl = [x for x in pre if x.tag.cls in ('wload', 'wupd')]
    rest = [x for x in pre if x.tag.cls not in ('wload', 'wupd')]
    xq = [s for s in range(13) if f"x{s}" not in cfg.seq]
    x_issue = {s: -1 for s in range(13) if s not in xq}
    bars = {}; advs = []; xadvs = []
    for t in range(13):
        g0 = 26*t
        if t < 12:
            bars[t+1] = put(bar(t+1), g0 + 25, g0 + 25)
            rp = [q for q in range(25) if not (t + NS <= 12 and q == (cfg.dma_pos_x if xq else cfg.dma_pos)[6])]
            for i, x in enumerate(reads(t+1)): put(x, g0 + rp[i], g0 + rp[i])
        ev = []
        dp = cfg.dma_pos_x if xq else cfg.dma_pos
        if t + NS <= 12:
            ev += [(p, wm0(t+NS, i), wdma(t+NS, i), i) for i, p in enumerate(dp)]
            advs.append((g0, dp[6]))
        for p in cfg.x_pos:
            if xq:
                s = xq.pop(0); a, bb = xdma(s); ev.append((p, a, bb, None)); x_issue[s] = t
                assert s >= t + 3
                xadvs.append((g0 + p, s))
        cur = None; lastp = -2
        for p, m, ins, i in sorted(ev, key=lambda e: e[0]):
            if m.text != cur:
                assert p - 1 > lastp, (t, p)
                put1(m, g0 + p - 1); cur = m.text
            if i == 6:
                a, bb, c = ins.text.split("\n"); put1(R(a), g0 + p); ins.text = bb + "\n" + c
            put(ins, g0 + p, g0 + p); lastp = p
    assert not xq
    def put_adv(ins, p, latest):
        ln = ins.text.split("\n")
        for i in range(0, len(ln), 2):
            x = puts(R(ln[i] + "\n" + ln[i+1]), p, latest); p = x.pos + 1
    for g0, dl in advs: put_adv(wadv(g0 // 26 + NS), g0 + dl + 1, g0 + 26)
    g = 26*cfg.unit_step
    tt_free = 0
    if 'us' in cfg.seq: sig_t = cfg.sig_step
    else:
        bars[cfg.unit_step].rd += regs('v', TT, 8)
        pm = [put(unit_perm(p, h, TT), g) for h in range(2) for p in range(4)]
        st = [put(unit_store(h, TT), g + cfg.late, after=[(x, 1) for x in pm]) for h in range(2)]
        sig_t = st[1].pos // 26 + cfg.lag_st; tt_free = st[1].pos + 2
    bars[sig_t].rd.append("Mw")
    sig_steps = list(range(sig_t, min(sig_t + cfg.nB, 11) + 1))
    for t in sig_steps:
        x = puts(R(f"s_cmp_eq_u32 s{S_SIG}, {t}\ns_cbranch_scc1 L_sig{t}"), 26*t + cfg.sig_pos, 26*t + 24)
        x.text += f"\nL_sigret{t}:"
    nb_ = len(sig_steps) - 1
    sigsetup.text = (f"s_lshr_b32 s42, s2, 1\ns_mul_i32 s43, s42, {65536 // nb_ + 1}\ns_lshr_b32 s43, s43, 16\ns_mul_i32 s43, s43, {nb_}\ns_sub_u32 s42, s42, s43\ns_add_u32 s42, s42, {sig_t + 1}\n"
                     f"s_cmp_lt_u32 s2, 44\ns_cselect_b32 s42, {sig_t}, s42\ns_cselect_b32 s43, 0, 128\n"
                     f"s_cmp_lt_u32 s2, 212\ns_cselect_b32 s42, s42, 255\ns_cmp_eq_u32 s16, 0\ns_cselect_b32 s{S_SIG}, s42, 255\n"
                     f"s_and_b32 s42, s2, 1\ns_lshl_b32 s42, s42, 6\ns_add_u32 s42, s42, s43\nv_mov_b32 v{BIAS}, s42\nv_mov_b32 v{BIAS+1}, 1")
    assert all((u*(65536 // nb_ + 1)) >> 16 == u // nb_ for u in range(128))
    lines = [l for x in deferred for l in x.text.split("\n") if l]
    groups = []
    for l in lines:
        if l.startswith(("s_addc", "s_subb", "s_cselect")): groups[-1].append(l)
        else: groups.append([l])
    p = cfg.def_from; defpos = {}
    for gr in groups:
        if gr[0].startswith("v_"): x = put(Vv(gr[0]), p)
        else: x = puts(R("\n".join(gr)), p)
        for l in gr: defpos[l.split()[1].rstrip(",")] = x.pos
        p = x.pos + (0 if not gr[0].startswith("v_") and False else 1)
    if groups:
        assert defpos[f"v{BIAS+1}"] < 26*sig_steps[0] + cfg.sig_pos and defpos["s98"] < cfg.bt_from
        assert defpos[f'v{VPOLL}'] < 26*cfg.poll_step + cfg.late and p < 26*(cfg.poll_step + cfg.lag_poll), p
    pl = put(I(f"global_load_dword v{VPOLLD}, v{VPOLL}, s[12:13] sc1", "G", wr=[f"v{VPOLLD}"]), 26*cfg.poll_step + cfg.late)
    bars[cfg.poll_step + cfg.lag_poll].rd.append(f"v{VPOLLD}")
    ck = 26*(cfg.poll_step + cfg.lag_poll)
    c1 = put(Vv(f"v_cmp_gt_u32 vcc, 22, v{VPOLLD}", rd=[f"v{VPOLLD}"]), ck)
    br = puts(R("s_cbranch_vccnz L_wait1"), c1.pos + 2); br.text += "\nL_ok1:"
    pf1 = put(I(f"global_load_dword v{VPFD}, v{VPF}, s[{SPF}:{SPF+1}]{cfg.ldflag}", "G", wr=[f"v{VPFD}"]), max(br.pos, ck + cfg.pf1_off))
    puts(R(f"s_add_u32 s{SPF}, s{SPF}, {LAYER_B}\ns_addc_u32 s{SPF+1}, s{SPF+1}, 0"), pf1.pos + 1)
    p = max(cfg.wl_from, pf1.pos + 1); prev = None
    for x in wl:
        if x.vm:
            prev = put(x, max(p if prev is None else prev.pos + cfg.wl_step, 26*12 + 4 if x.kind == 'B' else 0), after=[(lastu, 0)] if prev is not None and lastu else [])
            lastu = None
        else:
            lastu = puts(x, prev.pos + 1)
    T0, T1, T2 = 160, 161, 162
    x = None
    for txt in [f"v_bfe_u32 v{T0}, v{VL16}, 6, 2", f"v_cmp_eq_u32 vcc, 3, v{T0}", f"v_add_u32 v{T1}, s97, v{T0}", f"v_mov_b32 v{T2}, 12",
                f"v_cndmask_b32 v{T1}, v{T1}, v{T2}, vcc", f"v_mov_b32 v{T2}, 0.5", f"v_cndmask_b32 v{BT_SC}, 1.0, v{T2}, vcc",
                f"v_mov_b32 v{T2}, s98", f"v_cndmask_b32 v{T2}, 0, v{T2}, vcc",
                f"v_lshl_add_u32 v{T2}, v{T0}, 7, v{T2}", f"v_and_b32 v{T0}, 48, v{VL16}", f"v_lshl_add_u32 v{T1}, v{T1}, 6, v{T0}",
                f"v_add3_u32 v{T2}, v{T2}, v{T0}, s99", f"v_lshrrev_b32 v{T0}, 8, v{VL16}", f"v_lshl_add_u32 v{BT_A0}, v{T0}, 9, v{T2}",
                f"v_mul_u32_u24 v{T0}, 832, v{T0}", f"v_add_u32 v{T0}, v{T0}, v{T1}"]:
        x = put(Vv(txt), cfg.bt_from if x is None else x.pos + 1)
    bl = [put(I(f"global_load_dwordx4 {rng('v',TT+8*rd+4,4)}, v{T0}, s[8:9] offset:{1664*rd}", "G", wr=regs('v',TT+8*rd+4,4)), max(x.pos + 1 + rd, tt_free, cfg.bl_from)) for rd in range(2)]
    tb = bl[1].pos // 26 + cfg.lag_bl
    bars[tb].rd += regs('v', TT+4, 4) + regs('v', TT+12, 4)
    u_ = []
    for rd in range(2):
        for q in range(4):
            lo, hi = TT+8*rd+q, TT+8*rd+4+q
            x = put(Vv(f"v_lshlrev_b32 v{lo}, 16, v{hi}", rd=[f"v{hi}"], wr=[f"v{lo}"]), 26*tb)
            y = put(Vv(f"v_and_b32 v{hi}, s{SMASK}, v{hi}", rd=[f"v{hi}"], wr=[f"v{hi}"]), x.pos)
            u_ += [put(Vv(f"v_mul_f32 v{r_}, v{BT_SC}, v{r_}", rd=[f"v{r_}"], wr=[f"v{r_}"]), y.pos) for r_ in (lo, hi)]
    x = None
    for h in range(2):
        for rd in range(2):
            x = put(I(f"ds_write_b128 v{BT_A0}, {rng('v',TT+8*rd+4*h,4)} offset:{1024*rd}", "X", rd=regs('v',TT+8*rd+4*h,4)), max(26*11, 0 if x is None else x.pos + 1), after=[(y, 1) for y in u_])
        if h == 0: x = put(Vv(f"v_xor_b32 v{BT_A0}, 64, v{BT_A0}"), x.pos + 1)
    y = put(Vv(f"v_and_b32 v{VBIAS}, 48, v{VBIAS}"), 26*2)
    put(Vv(f"v_add3_u32 v{VBIAS}, v{VBIAS}, s99, v{T0}"), put(Vv(f"v_mov_b32 v{T0}, 512"), max(y.pos, bl[1].pos + 1)).pos + 1)
    bt_last = x; bt_valu = max(y.pos for y in u_)
    assert bt_valu < c1.pos
    ux = []
    for j in range(3):
        for r in range(4):
            ux.append((10 + j, X0F(j, r, 0), f"v{VXOWN} offset:{r*1024}"))
    ux.append((12, X0S, f"v{VXEW} offset:24576"))
    prev = None; rds = []; unp = {}
    for (s, d, adr) in ux:
        tb = max(x_issue[s] + cfg.lag_x, 1)
        if f"Lxc{s}" not in bars[tb].rd: bars[tb].rd.append(f"Lxc{s}")
        e = max(26*tb, cfg.unpack_from, bt_valu + 1 if d == X0F(2, 3, 0) else 0)
        if len(rds) % 4 == 0 and len(rds) < 12:
            j = len(rds) // 4
            a_, b_ = (VXE, VXO) if j % 2 == 0 else (VXO, VXE)
            prev = put(Vv(f"v_cndmask_b32 v{VXOWN}, v{a_}, v{b_}, s[{S_PAR}:{S_PAR+1}]", wr=[f"v{VXOWN}"]), e - 4 if prev is None else prev.pos)
            prev = put(Vv(f"v_add_u32 v{VXOWN}, s{S_OWNX+j}, v{VXOWN}", wr=[f"v{VXOWN}"]), prev.pos)
            assert prev.pos > defpos.get(f"s[{S_PAR}:{S_PAR+1}]", 0) + 1
        rd = put(I(f"ds_read_b128 {rng('v',d+4,4)}, {adr}", "D", rd=[adr.split()[0]], wr=regs('v',d+4,4)), e, 26*12 - 2, after=[(prev, 1)] if prev else [])
        prev = rd; rds.append((rd, d)); bars[12].rd += regs('v', d+4, 4)
    for rd, d in rds:
        last = None
        for q in range(4):
            for h in range(2):
                txt = f"v_lshlrev_b32 v{d+2*q}, 16, v{d+4+q}" if h == 0 else f"v_and_b32 v{d+2*q+1}, s{SMASK}, v{d+4+q}"
                nb = rd.pos + 8
                last = put(Vv(txt, rd=[f"v{d+4+q}"], wr=[f"v{d+2*q+h}"]), nb, after=[(last, 0)] if last else [])
                unp[d] = last
    wr = []
    def ep(D0, D1, x0, e0, dst, adr, tag):
        f = []
        for e in range(8):
            a = (D0 + e) if e < 4 else (D1 + e - 4)
            if cfg.mul0:
                ee = max(e0[e // 4] + 3, unp[x0].pos + 1)
                probe = Vv("x"); q = ee
                while not G0.fits(q, probe): q += 1
                if cfg.pk0 and e % 2 == 0 and q >= N0:
                    f.append(put(Vv(f"v_pk_mul_f32 v[{a}:{a+1}], v[{x0+e}:{x0+e+1}], v[{a}:{a+1}]", rd=[f"v{a}", f"v{a+1}", f"v{x0+e}", f"v{x0+e+1}"], wr=[f"v{a}", f"v{a+1}"]), ee)); skip = True
                elif e % 2 == 1 and skip: skip = False
                else:
                    f.append(put(Vv(f"v_mul_f32 v{a}, v{x0+e}, v{a}", rd=[f"v{a}", f"v{x0+e}"], wr=[f"v{a}"]), ee)); skip = False
                continue
            f.append(put(Vv(f"v_fma_f32 v{a}, v{x0+e}, v{a}, v{x0+e}", rd=[f"v{a}", f"v{x0+e}"], wr=[f"v{a}"]), e0[e // 4] + 3, after=[(unp[x0], 1)]))
        last = None
        for q in range(4):
            a = (D0 + 2*q) if q < 2 else (D1 + 2*q - 4)
            c = Vv(f"v_cvt_pk_bf16_f32 v{dst+q}, v{a}, v{a+1}", rd=[f"v{a}", f"v{a+1}"], wr=[f"v{dst+q}"])
            if tag: c.name = ({}, tag)
            last = put(c, bt_last.pos + 1 if dst == TT else 0, after=[(x, 0) for x in f] + ([(last, 0)] if last else []))
        wr.append(put(I(f"ds_write_b128 {adr[0]}, {rng('v',dst,4)} offset:{adr[1]}", "X", rd=regs('v',dst,4), wr=["Lx1"]), 0, after=[(last, 1)]))
    ep(XS, XS+4, X0S, (acc_done[(6,4)], acc_done[(7,4)]), TT, (f"v{VS}", 0), None)
    for j in range(3):
        for r in (3, 2, 1, 0):
            ep(ACC0(2*j, r), ACC0(2*j+1, r), X0F(j, r, 0), (acc_done[(2*j, r)], acc_done[(2*j+1, r)]), XV(j, r), (f"v{VRD[0]}", (j*4+r)*1024), ('X', 1, (0, j), r))
    pl2 = put(I(f"global_load_dword v{VPOLLD}, v{VPOLL}, s[12:13] offset:128 sc1", "G", wr=[f"v{VPOLLD}"]), N0)
    assert min(x.pos for x in wl if x.kind == "B") >= max(26*12, bt_last.pos + 1)
    L0 = []
    lastg = max(p for p in range(G0.n) if G0.g[p])
    for p in range(lastg + 1):
        if p < N0: L0.append(M0[p])
        elif p == N0:
            L0.append(R("s_nop 3"))
            if cfg.st2: stamp(L0)
        if cfg.stamp and p < N0 and p % 26 == 0 and (p // 26) in cfg.stamp_steps: stamp(L0)
        if cfg.diag and cfg.diag[0] == 'step' and p == 26*cfg.diag[2]: L0.append(R("s_memrealtime s[92:93]\ns_waitcnt lgkmcnt(0)"))
        L0.append(slot1[p] if p in slot1 else Wait())
        L0 += G0.ordered(p)
    stamp(L0)
    L0.append(Wait()); L0.append(I("s_barrier", "BAR", rd=["Lx1"]))
    if cfg.st2: stamp(L0)
    L0 += rest
    def rdx(slot, r):
        p, b = xreg(slot, r)
        if slot == 12: txt = f"ds_read_b128 {rng(p,b,4)}, v{VRD12} offset:{r*1024}"
        else: txt = f"ds_read_b128 {rng(p,b,4)}, v{VRD[slot[0]]} offset:{(slot[1]*4+r)*1024}"
        ins = I(txt, "D", wr=regs(p,b,4)); ins.name = ({}, ('X', 1, slot, r)); return ins
    oth = []
    for x in body:
        if x.kind == "M" and x.layer == 1 and x.pos < 52:
            tg = [v for v in x.name[0].values() if v[0] == 'X'][0]
            if tg[2] == 12 or tg[2][0] != 0: oth.append(rdx(tg[2], tg[3]))
    for _ in range(cfg.first_reads): L0.append(oth.pop(0))
    L0.append(Wait())
    nb = []
    for k, x in enumerate(body):
        nb.append(x)
        if isinstance(x, Wait) and x.layer == 1:
            extra = []
            if oth: extra.append(oth.pop(0))
            if x.pos == cfg.chk2 + 1:
                extra.append(Vv(f"v_cmp_gt_u32 vcc, 84, v{VPOLLD}", rd=[f"v{VPOLLD}"]))
            if x.pos == cfg.chk2 + 4:
                extra.append(R("s_cbranch_vccnz L_wait2\nL_ok2:"))
            for e in extra: e.layer, e.pos = x.layer, x.pos
            nb += extra
    body = nb
    if cfg.tstore: body = transpose_stores(body, cfg)
    full = S + L0 + body
    insert_waits(full)
    init = {f"s{SOWN}": ('s',1,0), f"s{SOWN12}": ('s',1,0), f"s{STS}": ('s',1,'S'), f"s{SSPEC}": ('s',1), f"v{VBIAS}": ('vb',1)}
    i0 = len(S) + len(L0)
    fix = R(""); fix.wr = regs('v', XS, 8); fix.name = ({}, ('XS', 1))
    check_tags(full[:i0] + [fix] + full[i0:], init)
    SPLIT = cfg.split
    segs = {}
    for x in body: segs.setdefault(min(x.layer + (1 if x.pos >= SPLIT else 0), cfg.nlayers), []).append(x)
    loop = [segs[k] for k in range(2, cfg.nlayers)]
    for sg in loop[1:]:
        assert len(sg) == len(loop[0]) and all(a.text == b.text and a.kind == b.kind for a, b in zip(sg, loop[0]))
    for tup in zip(*loop):
        if isinstance(tup[0], Wait):
            vm = [w.vmn for w in tup if w.vmn is not None]; lg = [w.lgn for w in tup if w.lgn is not None]
            for w in tup:
                w.vmn = min(vm) if vm else None; w.lgn = min(lg) if lg else None
    verify_waits(full)
    fin = segs[cfg.nlayers]
    errs = check_hazards(full)
    assert not errs, errs
    out = [f".globl {KN}\n.p2align 8\n.type {KN},@function\n{KN}:"]
    out += render(S) + render(L0) + render(segs[1])
    if cfg.diag: out.append("s_memrealtime s[64:65]\ns_waitcnt lgkmcnt(0)")
    if cfg.loopalign: out.append(".p2align 6")
    out.append("L_loop:")
    if cfg.stamp:
        out.append(f"{TM} s[64:65]\ns_waitcnt lgkmcnt(0)\ns_sub_u32 s64, s64, s{T0R}\ns_sub_u32 m0, {nst[0]+3}, s{SCNT}\ns_nop 0\nv_writelane_b32 v0, s64, m0")
        nst[0] += 4
    out += render(loop[0])
    out.append(f"s_sub_u32 s{SCNT}, s{SCNT}, 1\ns_cbranch_scc0 L_loop")
    if cfg.stamp:
        t = []; stamp(t); out += render(t)
    fr = render(fin)
    if cfg.abl == 'nostore': fr = [t for t in fr if not t.startswith("global_store")]
    if cfg.abl == 'laststore':
        idx = [i for i, t in enumerate(fr) if t.startswith("global_store")][:-4]
        fr = [t for i, t in enumerate(fr) if i not in idx]
    if cfg.abl == 'quadstore':
        fr = [f"v_lshrrev_b32 v{VOUT}, 6, v{VL16}\nv_mul_u32_u24 v{VOUT}, 832, v{VOUT}\nv_and_b32 v{VOUT12}, 48, v{VL16}\nv_add_u32 v{VOUT}, v{VOUT}, v{VOUT12}\ns_mul_i32 s42, s16, 13312\ns_add_u32 s42, s42, 768\nv_add_u32 v{VOUT12}, s42, v{VOUT}\ns_mul_i32 s42, s16, 192\nv_add_u32 v{VOUT}, s42, v{VOUT}"] + fr
    out += fr
    if cfg.stamp:
        out.append("s_memtime s[66:67]\ns_waitcnt vmcnt(0)\ns_memtime s[68:69]\ns_memrealtime s[70:71]\ns_waitcnt lgkmcnt(0)")
        out.append("s_sub_u32 s66, s66, s60\ns_sub_u32 s68, s68, s60")
        out.append(f"v_writelane_b32 v0, s{S_TRY}, 0\nv_writelane_b32 v0, s66, 1\nv_writelane_b32 v0, s68, 2\nv_writelane_b32 v0, s62, 3\nv_writelane_b32 v0, s70, 4")
        out.append(f"s_lshl_b32 s42, s2, 2\ns_add_u32 s42, s42, s16\ns_lshl_b32 s42, s42, 7\ns_add_u32 s42, s42, {4<<20}")
        out.append(f"v_lshrrev_b32 v9, 2, v{VL16}\nv_add_u32 v9, s42, v9\ns_mov_b64 exec, 0xffffffff\nglobal_store_dword v9, v0, s[14:15]")
    if cfg.diag:
        kind, K = cfg.diag[:2]
        out.append("s_waitcnt vmcnt(0)\ns_memrealtime s[66:67]\ns_waitcnt lgkmcnt(0)")
        if kind == 'total': out.append("s_sub_u32 s68, s66, s62")
        elif kind == 'l0': out.append("s_sub_u32 s68, s64, s62")
        elif kind == 'main': out.append("s_sub_u32 s68, s66, s64")
        elif kind == 'spin': out.append("s_mul_i32 s68, s90, 100")
        elif kind == 'step': out.append("s_sub_u32 s68, s92, s62")
        elif kind in ('atom', 'spin1', 'spin2'): out.append("s_mov_b32 s68, s90")
        elif kind in ('skew',):
            out.append("s_not_b32 s69, s62\nv_mov_b32 v4, 32\nv_mov_b32 v5, s69\ns_mov_b64 exec, 1\nglobal_atomic_umax v4, v5, s[12:13] sc1\ns_waitcnt vmcnt(0)\ns_sleep 127\ns_sleep 127\ns_sleep 127\ns_sleep 127\nglobal_load_dword v6, v4, s[12:13] sc1\ns_waitcnt vmcnt(0)\nv_readfirstlane_b32 s69, v6\ns_not_b32 s69, s69\ns_sub_u32 s68, s62, s69\ns_memrealtime s[66:67]\ns_waitcnt lgkmcnt(0)")
        if cfg.diag_wg: out.append(f"s_cmp_ge_u32 s2, {cfg.diag_wg[0]}\ns_cselect_b32 s68, s68, 0\ns_cmp_lt_u32 s2, {cfg.diag_wg[1]}\ns_cselect_b32 s68, s68, 0")
        out.append(f"s_min_u32 s68, s68, 10000\ns_mul_i32 s68, s68, {K}")
        out.append("L_dspin:\ns_sleep 2\ns_memrealtime s[70:71]\ns_waitcnt lgkmcnt(0)\ns_sub_u32 s69, s70, s66\ns_cmp_lt_u32 s69, s68\ns_cbranch_scc1 L_dspin")
    out.append("s_endpgm")
    pre_a = post_a = ""
    if cfg.diag and cfg.diag[0] == 'atom':
        pre_a = "s_waitcnt vmcnt(0)\ns_memrealtime s[92:93]\ns_waitcnt lgkmcnt(0)\n"
        post_a = "s_waitcnt vmcnt(0)\ns_memrealtime s[94:95]\ns_waitcnt lgkmcnt(0)\ns_sub_u32 s90, s94, s92\n"
    for t in sig_steps:
        out.append(f"L_sig{t}:\ns_mov_b64 exec, 1\n{pre_a}global_atomic_add v{BIAS}, v{BIAS+1}, s[12:13] sc1\n{post_a}s_mov_b64 exec, -1\ns_branch L_sigret{t}")
    for k, cmp_ in ((1, f"v_cmp_gt_u32 vcc, 22, v{VPOLLD}"), (2, f"v_cmp_gt_u32 vcc, 84, v{VPOLLD}")):
        out.append(f"""L_wait{k}:
s_mov_b32 s{S_RET}, {k}
s_mov_b32 s{S_TRY}, {cfg.tries}
L_spin{k}:
s_sub_u32 s{S_TRY}, s{S_TRY}, 1
s_cbranch_scc1 L_self
{"s_add_u32 s90, s90, 1" if cfg.diag and cfg.diag[0] == 'spin' else ("s_add_u32 s90, s90, 100" if cfg.diag and cfg.diag[0] == f'spin{k}' else "")}
s_sleep {cfg.psleep}
global_load_dword v{VPOLLD}, v{VPOLL}, s[12:13] offset:{128*(k-1)} sc1
s_waitcnt vmcnt(0)
{cmp_}
s_nop 4
s_cbranch_vccnz L_spin{k}
s_branch L_ok{k}""")
    fb = [f"L_self:\ns_cmp_eq_u32 s{S_RET}, 1\ns_cbranch_scc0 L_self2"] + [f"v_accvgpr_write_b32 a{112+i}, v{TT+i}" for i in range(16)]
    fb += [f"L_self2:\ns_mov_b32 s{SRD_US+2}, {6*LAYER_B}\ns_mov_b32 s{SRD_UD+2}, {WOFF + 6*LAYER_B}\ns_mov_b32 s17, 0\nL_selfloop:", unit_addr(17)]
    fb += [unit_load(e, TT).text for e in range(8)] + ["s_waitcnt vmcnt(0)"]
    fb += [unit_perm(p, h, TT).text for h in range(2) for p in range(4)] + [unit_store(h, TT).text for h in range(2)]
    fb.append(f"s_waitcnt vmcnt(0)\ns_add_u32 s17, s17, 1\ns_cmp_lt_u32 s17, {NUNIT}\ns_cbranch_scc1 L_selfloop")
    fb.append(f"s_cmp_eq_u32 s{S_RET}, 1\ns_cbranch_scc0 L_ok2")
    fb += [f"v_accvgpr_read_b32 v{TT+i}, a{112+i}" for i in range(16)] + ["s_branch L_ok1"]
    out += fb
    out.append("L_end:\ns_endpgm")
    info.update(sig_t=sig_t, l0_last=lastg, x_issue=x_issue)
    return "\n".join(out), info

def mix(xs, ws, ratio):
    out = []; acc = 0.0; wq = [f"w{t}:{i}-{i+1}" for t in ws for i in range(7)]
    for x in xs:
        out.append(f"x{x}"); acc += ratio
        while acc >= 1 and wq: out.append(wq.pop(0)); acc -= 1
    return out + wq

class C2(Cfg):
    stamp = False
    stamp_steps = tuple(range(1, 13))
    codepf = True
    xflag = ' nt'
    stflag = " nt"
    split = 54
    loopalign = True
    seq = ['karg','pf','b0'] + mix(range(7),[0],1) + ['sb','u','pb','sa','cq'] + mix(range(7,13),[1],1) + ['cu','rd0','us','w2','w3']
    pfa = (0, 5)
    wsplit = 2

    dma_pos = [1, 4, 7, 10, 13, 16, 19]
    x_pos = [21, 23]
    late = 22
    diag = None
    diag_wg = None
    psleep = 8
    st_pos = [160,190,220,250,262,274,286,298,310]
    tstore = True
    ts_lag = 6
    stflags = None
    mul0 = True
    pk0 = True
    st2 = False
    abl = None
    bt_from = 8
    bl_from = 26 + 20
    lag_bl = 3
    def_from = 0
    sig_pos = 20
    dma_pos_x = [1, 4, 7, 10, 13, 16, 19]
    ns = 4
    sig_step = 1
    lag_x = 3
    lag_st = 3
    lag_poll = 2
    pf1_off = 16
    nB = 7
    codepf_share = True
    unit_step = 1
    unpack_from = 26*5
    poll_step = 6
    wl_from = 26*9 + 1
    wl_step = 4
    first_reads = 8
    chk2 = 40
    tries = 20000

HEAD = """; DCN-v2 cross network, 6 layers, B=16384, D=416, bf16 (written out by my own scheduling script)
; Kernarg: x0, ws, bs, out, debug, workspace
"""
def gen(cfg):
    mk, info = main_kernel(cfg)
    txt = HEAD + f"; @launch grid=(256,1,1) block=(256,1,1) lds={LDS_BYTES}\n"
    txt += '.amdgcn_target "amdgcn-amd-amdhsa--gfx950"\n.text\n' + mk + "\n"
    txt += '.section .rodata,"a"\n.p2align 6\n' + kd(KN, 512, 256)
    return txt, info

if __name__ == "__main__":
    cfg = C2()
    for a in sys.argv[2:]:
        k, v = a.split("=", 1); assert hasattr(cfg, k), k; setattr(cfg, k, eval(v))
    txt, info = gen(cfg)
    open(sys.argv[1], "w").write(txt)
    print(info, len(txt.splitlines()), "lines")
```

```python
import sys
from fast import *

KN = "standalone__dcn_v2_cross__recsys_kernel"
import os
WOFF = int(os.environ.get('WOFF', 65536))
L_RING = 53248
BLK = 6664
STG = 4*BLK
L_B0 = L_RING + 4*STG
LDS_BYTES = L_B0 + 1024
def slot(t): return (t + 3) % 4
AORD = [0, 6, 7, 1, 8, 2, 9, 3, 10, 4, 11, 5, 12]
NUNIT = 845

for u in range(1024): assert (u*24819) >> 22 == u // 169
for u in range(169): assert (u*5042) >> 16 == u // 13
for u in range(64): assert (u*21846) >> 16 == u // 3

VL16, VL16B, VLW, VTR, VTR12, VUS, VPOLL, VPOLLD = 2, 3, 251, 252, 253, 254, 255, 1
def WB(b, t): return b*32 + t*4
def XB(b, r): return 64 + b*20 + r*4
def ACC0(t, r):
    if t >= 6: return XS + 4*(t-6)
    j, h = t // 2, t % 2
    if h == 0: return XV(j, r)
    return [ACC(0), X12(0), HOLD(0)][j] + 4*r
VXE, VXO, VXEW, VXOW, VXOWN, VXD = BIAS+2, BIAS+3, VLW, VOUT, VOUT12, SPEC
VTRB, VTR12B = SPEC+1, SPEC+2
CQ = 68
BT_A0, BT_SC = SPEC+3, 163
CRAW = 100
S_XM0, S_RM0 = 46, 47
SRD_US, SRD_UD, S_US0, S_US1, S_UD0, S_UD1 = 48, 52, 56, 57, 58, 59
S_SEL0, S_SEL1, SRD_B, S_PC = 72, 73, 76, 80
S_RET, S_TRY, S_SIG = 74, 75, 82
S_OWNX, S_PAR = 84, 88

def kd(name, nv, acc, ns=102):
    return f""".amdhsa_kernel {name}
  .amdhsa_next_free_vgpr {nv}
  .amdhsa_next_free_sgpr {ns}
  .amdhsa_accum_offset {acc}
  .amdhsa_group_segment_fixed_size 0
  .amdhsa_kernarg_size 48
  .amdhsa_user_sgpr_count 2
  .amdhsa_user_sgpr_kernarg_segment_ptr 1
  .amdhsa_system_sgpr_workgroup_id_x 1
  .amdhsa_float_denorm_mode_32 3
.end_amdhsa_kernel
"""
def R(txt): return I(txt, "S")
def Vv(txt, rd=(), wr=()): return I(txt, "V", rd=rd, wr=wr)

def unit_addr(ureg):
    return (f"s_mul_i32 s42, s{ureg}, 24819\ns_lshr_b32 s42, s42, 22\n"
            f"s_mul_i32 s43, s42, 169\ns_sub_u32 s43, s{ureg}, s43\n"
            f"s_mul_i32 s44, s43, 5042\ns_lshr_b32 s44, s44, 16\n"
            f"s_mul_i32 s45, s44, 13\ns_sub_u32 s45, s43, s45\n"
            f"s_add_u32 s42, s42, 1\ns_mul_i32 s42, s42, {LAYER_B}\n"
            f"s_mul_i32 s{S_US0}, s44, 26624\ns_add_u32 s{S_US0}, s{S_US0}, s42\ns_lshl_b32 s43, s45, 6\ns_add_u32 s{S_US0}, s{S_US0}, s43\n"
            f"s_add_u32 s{S_US1}, s{S_US0}, 3328\n"
            f"s_mul_i32 s{S_UD0}, s45, 26624\ns_add_u32 s{S_UD0}, s{S_UD0}, s42\ns_lshl_b32 s43, s44, 10\ns_add_u32 s{S_UD0}, s{S_UD0}, s43\n"
            f"s_add_u32 s{S_UD0}, s{S_UD0}, {WOFF}\ns_add_u32 s{S_UD1}, s{S_UD0}, {TILE_B}")
def unit_load(e, base):
    return I(f"buffer_load_dword v{base+e}, v{VUS}, s[{SRD_US}:{SRD_US+3}], s{S_US0 if e < 4 else S_US1} offen offset:{(e%4)*832}", "B", wr=[f"v{base+e}"])
def unit_perm(p, h, base):
    return Vv(f"v_perm_b32 v{base+8+4*h+p}, v{base+2*p+1}, v{base+2*p}, s{S_SEL1 if h else S_SEL0}", rd=[f"v{base+2*p+1}", f"v{base+2*p}"], wr=[f"v{base+8+4*h+p}"])
def unit_store(h, base):
    return I(f"buffer_store_dwordx4 {rng('v',base+8+4*h,4)}, v{VL16}, s[{SRD_UD}:{SRD_UD+3}], s{S_UD1 if h else S_UD0} offen sc1", "T", rd=regs('v',base+8+4*h,4), wr=["Mw"])


VWS, VWS12 = VTR, VTR12
def transpose_stores(body, cfg):
    NL = cfg.nlayers
    key = lambda x: (x.layer - (NL-1))*NM + x.pos
    head = [x for x in body if key(x) < cfg.split]
    tail = [x for x in body if key(x) >= cfg.split]
    G = Gaps(NM + 200)
    mf = {}
    moved = []
    stores = []
    for x in tail:
        p = key(x)
        if x.kind == "M": mf[p] = x
        elif isinstance(x, Wait): pass
        elif x.kind == "T": stores.append((p, x))
        elif x.name and x.name[1] and x.name[1][0] == 'U' and (x.name[1][2] % 2 == 0 or x.name[1][2] == 1): moved.append((p, x))
        else: x.pos = p; G.g[p].append(x)
    fpos = {x.name[1][1:]: x.pos for g in G.g for x in g if x.name and x.name[1] and x.name[1][0] == 'F'}
    prev = None
    for txt in [f"v_bfe_u32 v{VLW}, v{VL16}, 5, 2", f"v_lshrrev_b32 v{VWS}, 8, v{VL16}", f"v_xor_b32 v{VLW}, v{VLW}, v{VWS}",
                f"v_and_b32 v{VWS}, 0xf0, v{VL16}", f"v_lshlrev_b32 v{VWS}, 2, v{VWS}", f"v_lshl_add_u32 v{VWS}, v{VLW}, 4, v{VWS}",
                f"s_add_u32 s42, s{S_XM0}, {L_X12}", f"v_add_u32 v{VWS12}, s42, v{VWS}", f"s_mul_i32 s42, s16, {GSTR}", f"v_add_u32 v{VWS}, s42, v{VWS}",
                f"v_bfe_u32 v{VLW}, v{VL16}, 7, 2", f"v_bfe_u32 v{VOUT}, v{VL16}, 4, 2", f"v_xor_b32 v{VLW}, v{VLW}, v{VOUT}",
                f"v_lshrrev_b32 v{VOUT}, 6, v{VL16}", f"v_mul_u32_u24 v{VOUT}, 832, v{VOUT}", f"v_lshl_add_u32 v{VOUT}, v{VLW}, 4, v{VOUT}",
                f"s_mul_i32 s42, s16, 13312", f"s_add_u32 s42, s42, 768", f"v_add_u32 v{VOUT12}, s42, v{VOUT}", f"s_mul_i32 s42, s16, 192", f"v_add_u32 v{VOUT}, s42, v{VOUT}"]:
        prev = G.place(Vv(txt) if txt[0] == 'v' else R(txt), cfg.split + 4 if prev is None else prev.pos + 1)
    free = {}; lastdef = 0
    for p, x in stores: G.g[p].append(I('', 'X'))
    for n, (p, x) in enumerate(stores):
        d = int(x.rd[0][1:]); shared = d == TT + 12
        assert p > prev.pos
        if shared: wa, ra = f"v{VWS12}", f"v{VS}"; wo = ""
        else:
            j = int(x.text.split("offset:")[1].split()[0]) // 64; r = (d - HOLD(0)) // 4
            wa, wo, ra = f"v{VWS}", f" offset:{(j*4+r)*1024}", f"v{VRD[0]} offset:{(j*4+r)*1024}"
        w = I(f"ds_write_b128 {wa}, {rng('v',d,4)}{wo}", "X", rd=x.rd); w.name = x.name; w.pos = p; G.g[p] = [y for y in G.g[p] if y.text] + [w]
        if cfg.st_pos and n < len(cfg.st_pos) and cfg.st_pos[n]:
            src = x.rd; t_ = SPEC
            x.text = x.text.replace(rng('v',d,4), rng('v',t_,4)); x.rd = regs('v',t_,4)
            rd = I(f"ds_read_b128 {rng('v',t_,4)}, {ra}", "D", wr=x.rd); rd.name = ({}, ('TR', n))
            G.place(rd, max(p + 1, cfg.st_pos[n] - cfg.ts_lag, lastdef + 1))
            x.name = ({q: ('TR', n) for q in x.rd}, None)
            G.place(x, rd.pos + cfg.ts_lag); lastdef = x.pos
            for q in src: free.setdefault(q, []).append((p, p))
            continue
        rd = I(f"ds_read_b128 {rng('v',d,4)}, {ra}", "D", wr=x.rd); rd.name = ({}, ('TR', n))
        G.place(rd, p + 1)
        x.name = ({q: ('TR', n) for q in x.rd}, None)
        fl = cfg.stflags[min(n, len(cfg.stflags)-1)] if cfg.stflags else None
        if fl is not None: x.text = x.text.replace(cfg.stflag, fl)
        G.place(x, rd.pos + cfg.ts_lag)
        for q in x.rd: free.setdefault(q, []).append((p, x.pos))
    for p, x in moved:
        tg = x.name[1]; dl = fpos[tg[1:]] - 1
        e = max([p] + [b + 1 for a, b in free.get(x.wr[0], []) if a < dl])
        G.place(x, e, dl)
    out = []
    for p in range(cfg.split, G.n):
        lst = G.ordered(p)
        if p in mf: out.append(mf[p])
        if p in mf or lst:
            w = Wait(); out.append(w); out += lst
            for y in [w] + lst: y.layer, y.pos = NL - 1 + p // NM, p % NM
    return head + out

def main_kernel(cfg):
    mf, G, items, info = build_schedule(cfg)
    pre, body = unroll(mf, G, cfg, 1)
    S = []
    A = lambda t: S.append(R(t))
    nst = [5]
    TM, T0R = ("s_memrealtime", 62) if cfg.stamp == 'rt' else ("s_memtime", 60)
    def stamp(lst=None):
        if not cfg.stamp: return
        t = R(f"{TM} s[64:65]\ns_waitcnt lgkmcnt(0)\ns_sub_u32 s64, s64, s{T0R}\nv_writelane_b32 v0, s64, {nst[0]}")
        nst[0] += 1
        (S if lst is None else lst).append(t)
    if cfg.stamp: A(f"s_memtime s[60:61]\ns_memrealtime s[62:63]\ns_mov_b32 s{S_TRY}, 0")
    if cfg.diag: A(f"s_memrealtime s[62:63]\ns_mov_b32 s{S_TRY}, {cfg.tries}\ns_mov_b32 s90, 0")
    A("s_cmp_ge_u32 s2, 256\ns_cbranch_scc1 L_end")
    A("s_load_dwordx8 s[4:11], s[0:1], 0\ns_load_dwordx4 s[12:15], s[0:1], 32")
    if cfg.codepf:
        A(f"s_getpc_b64 s[{S_PC}:{S_PC+1}]\nL_pc:")
        if cfg.codepf_share:
            A("s_lshr_b32 s42, s2, 3\ns_and_b32 s42, s42, 31\nv_and_b32 v4, 0xe0, v0\nv_add_u32 v4, s42, v4\nv_lshlrev_b32 v4, 7, v4")
        else: A("v_lshlrev_b32 v4, 7, v0")
        A("v_min_u32 v4, L_end-L_pc, v4")
        S.append(I(f"global_load_dword v{VPFD}, v4, s[{S_PC}:{S_PC+1}]", "G", wr=[f"v{VPFD}"]))
    A("v_lshrrev_b32 v1, 6, v0\nv_and_b32 v0, 63, v0\ns_nop 0\nv_readfirstlane_b32 s16, v1")
    A(f"v_lshlrev_b32 v{VL16}, 4, v0\nv_add_u32 v{VL16B}, 4096, v{VL16}")
    A("v_and_b32 v5, 15, v0\nv_lshrrev_b32 v6, 4, v0\nv_lshlrev_b32 v1, 4, v6\nv_bfe_u32 v8, v0, 2, 2\nv_and_b32 v12, 48, v2")
    A(f"s_mul_i32 s43, s16, 13312\nv_lshrrev_b32 v9, 3, v0\nv_mul_u32_u24 v9, 1664, v9\nv_and_b32 v10, 32, v0\nv_and_b32 v11, 0x70, v{VL16}\nv_xor_b32 v10, v11, v10\nv_add3_u32 v{VXD}, v9, v10, s43")
    A("s_mul_i32 s42, s16, 3\nv_add_u32 v13, s42, v6\nv_cmp_eq_u32 vcc, 3, v6\nv_mov_b32 v14, 12\nv_lshlrev_b32 v15, 2, v5\nv_cndmask_b32 v13, v13, v14, vcc\nv_lshl_add_u32 v14, v13, 6, v15")
    A(f"s_lshl_b32 s96, s16, 8\ns_add_u32 s96, s96, {L_B0}")
    A(f"s_lshl_b32 s{S_XM0}, s16, 10\ns_mul_i32 s{S_RM0}, s16, {BLK}\ns_add_u32 s{S_RM0}, s{S_RM0}, {L_RING}")
    A("s_mul_i32 s31, s2, 53248\ns_mul_i32 s83, s16, 6656")
    def setup_pf():
      A(f"s_lshr_b32 s44, s2, 3\ns_and_b32 s44, s44, 31\ns_lshl_b32 s44, s44, 2\ns_add_u32 s44, s44, s16")
      A(f"v_lshrrev_b32 v{VPF}, 4, v{VL16}\nv_mul_u32_u24 v{VPF}, 21846, v{VPF}\nv_lshrrev_b32 v{VPF}, 16, v{VPF}\nv_lshl_add_u32 v{VPF}, v{VPF}, 7, s44\nv_min_u32 v{VPF}, 2703, v{VPF}\nv_lshlrev_b32 v{VPF}, 7, v{VPF}")
    early_pf = any(e.startswith('pf') for e in cfg.seq)
    if early_pf: setup_pf()
    sigsetup = R('')
    def setup_a():
        A("s_mul_i32 s42, s16, 192")
        A(f"v_mul_u32_u24 v10, {BLK}, v6\nv_mul_u32_u24 v11, 832, v8\nv_add3_u32 v10, v10, v11, v12")
        A(f"s_add_u32 s42, s42, {L_RING}\nv_add_u32 v{VTR}, s42, v10\nv_add_u32 v{VTR12}, {L_RING+768}, v10")
        A(f"v_add_u32 v{VTRB}, {2*STG}, v{VTR}\nv_add_u32 v{VTR12B}, {2*STG}, v{VTR12}")
        A(f"v_lshlrev_b32 v34, 2, v5\nv_and_b32 v34, 32, v34\nv_xor_b32 v34, v34, v1\nv_lshl_add_u32 v34, v5, 6, v34\nv_and_b32 v35, 1, v5")
        A(f"v_mul_u32_u24 v36, 24576, v35\nv_add_u32 v{VXE}, v34, v36\nv_xor_b32 v34, 64, v34\nv_mul_u32_u24 v36, 28672, v35\nv_add_u32 v{VXO}, v34, v36")
        A(f"v_add_u32 v{VXEW}, s{S_XM0}, v{VXE}\nv_add_u32 v{VXOW}, s{S_XM0}, v{VXO}")
        A(f"v_add_u32 v{VBIAS}, s96, v1\ns_mov_b32 s{SMASK}, 0xffff0000")
    def setup_b():
        A(f"v_mul_u32_u24 v{VUS}, 6656, v6\nv_lshl_add_u32 v{VUS}, v5, 2, v{VUS}")
        A(f"s_lshl_b32 s17, s2, 2\ns_add_u32 s17, s17, s16")
        A(unit_addr(17))
        A(f"s_cmp_lt_u32 s17, {NUNIT}\ns_cselect_b32 s{SRD_US+2}, {0 if cfg.abl == 'nould' else 6*LAYER_B}, 0\ns_cselect_b32 s{SRD_UD+2}, {0 if cfg.abl in ('nould', 'noust') else WOFF + 6*LAYER_B}, 0")
        A(f"s_mov_b32 s{SRD_US+3}, 0x20000\ns_mov_b32 s{SRD_UD+3}, 0x20000\ns_mov_b32 s{S_SEL0}, 0x05040100\ns_mov_b32 s{S_SEL1}, 0x07060302")
    def setup_c():
        A(f"s_mul_i32 s97, s16, 3\ns_mul_i32 s99, s16, {GSTR}\ns_add_u32 s99, s99, {L_BIAS}\ns_lshr_b32 s98, s16, 1\ns_lshl_b32 s98, s98, 6")
        S.append(sigsetup)
        if not early_pf: setup_pf()
        for d in range(4):
            A(f"s_add_u32 s42, s16, {d}\ns_and_b32 s42, s42, 3\ns_mul_i32 s44, s42, 3072\ns_lshl_b32 s43, s44, 2")
            A(f"v_add_u32 v{VRD[d]}, s43, v{VL16}\nv_add_u32 v{VW[d]}, s44, v{VL16}")
        A(f"v_add_u32 v{VRD12}, {L_X12}, v{VL16}\nv_add_u32 v{VS}, s{S_XM0}, v{VRD12}")
        A(f"s_mov_b32 s{SCNT}, {cfg.nlayers-3}\nv_and_b32 v{VPOLL}, 16, v{VL16}\nv_lshlrev_b32 v{VPOLL}, 2, v{VPOLL}")
        for j in range(3):
            A(f"s_add_u32 s42, s97, {j}\ns_lshr_b32 s42, s42, 1\ns_lshl_b32 s{S_OWNX+j}, s42, 12")
        A(f"s_bitcmp1_b32 s16, 0\ns_cselect_b64 s[{S_PAR}:{S_PAR+1}], -1, 0")
    def setup_p():
        A(f"s_add_u32 s{SPF}, s14, {WOFF + LAYER_B}\ns_addc_u32 s{SPF+1}, s15, 0")
        A(f"s_mul_i32 s42, s16, {6*TILE_B}\ns_add_u32 s{SOWN}, s{SPF}, s42\ns_addc_u32 s{SOWN+1}, s{SPF+1}, 0")
        A(f"s_sub_u32 s{SOWN12}, s{SOWN}, {L_X12-12288}\ns_subb_u32 s{SOWN12+1}, s{SOWN+1}, 0")
        A(f"s_lshr_b32 s42, s16, 1\ns_add_u32 s42, s42, 24\ns_mul_i32 s42, s42, {TILE_B}")
        A(f"s_add_u32 s{STS}, s{SPF}, s42\ns_addc_u32 s{STS+1}, s{SPF+1}, 0\ns_add_u32 s{SSPEC}, s42, {12288 + LAYER_B + WOFF - L_X12}")
        A(f"s_mov_b32 s{SRD}, s14\ns_mov_b32 s{SRD+1}, s15\ns_mov_b32 s{SRD+3}, 0x20000")
        A(f"s_and_b32 s42, s16, 1\ns_cmp_eq_u32 s42, 0\ns_cselect_b32 s{SRD+2}, {WOFF + 6*LAYER_B}, 0")
        for r in range(4):
            A(f"s_add_u32 s42, s31, {r*13312}\ns_add_u32 s{SOUT(r)}, s10, s42\ns_addc_u32 s{SOUT(r)+1}, s11, 0")
    def do_karg():
        A("s_waitcnt lgkmcnt(0)")
        stamp()
        A(f"s_mov_b32 s{SRD_US}, s6\ns_mov_b32 s{SRD_US+1}, s7")
        A("s_add_u32 s4, s4, s31\ns_addc_u32 s5, s5, 0")
        A("s_add_u32 s6, s6, s83\ns_addc_u32 s7, s7, 0")
    def do_cq():
        S.append(Wait())
        for u in range(4):
            S.append(I(f"ds_read_b128 {rng('v',CRAW+4*u,4)}, v{VBIAS} offset:{u*64}", "D", rd=["Lb0"], wr=regs('v',CRAW+4*u,4)))
    def do_cu():
        for u in range(4):
            S.append(Wait())
            for q in range(4):
                S.append(Vv(f"v_lshlrev_b32 v{CQ+8*u+2*q}, 16, v{CRAW+4*u+q}", rd=[f"v{CRAW+4*u+q}"], wr=[f"v{CQ+8*u+2*q}"]))
                S.append(Vv(f"v_and_b32 v{CQ+8*u+2*q+1}, s{SMASK}, v{CRAW+4*u+q}", rd=[f"v{CRAW+4*u+q}"], wr=[f"v{CQ+8*u+2*q+1}"]))
            if cfg.mul0:
                for q in range(4):
                    a = CQ+8*u+2*q
                    S.append(Vv(f"v_pk_add_f32 v[{a}:{a+1}], v[{a}:{a+1}], 1.0 op_sel_hi:[1,0]", rd=[f"v{a}", f"v{a+1}"], wr=[f"v{a}", f"v{a+1}"]))
    def xdma(s):
        o = AORD[s]*128
        return [R(f"s_add_u32 m0, s{S_XM0}, {AORD[s]*4096 - o}"),
                I(f"global_load_lds_dwordx4 v{VXD}, s[4:5] offset:{o}{cfg.xflag}", "G", wr=[f"Lxc{s}"])]
    def wdma(t, i):
        v = VL16 if i < 4 else VL16B
        txt = f"global_load_lds_dwordx4 v{v}, s[6:7] offset:{(i%4)*1024}"
        if i == 6: txt = "s_mov_b64 exec, 0xffffffff\n" + txt + "\ns_mov_b64 exec, -1"
        return I(txt, "G", wr=[f"Lw{t}"])
    def wm0(t, i): return R(f"s_add_u32 m0, s{S_RM0}, {slot(t)*STG + (4096 if i >= 4 else 0)}")
    def wadv(t):
        x = "s_add_u32 s6, s6, 26624\ns_addc_u32 s7, s7, 0"
        return R(x)
    def pro_x(s):
        a, b = xdma(s); S.extend([a, R("s_nop 0"), b])
    def pro_w(t, lo=0, hi=7):
        for i in range(lo, hi):
            if i in (lo, 4): S.extend([wm0(t, i), R("s_nop 0")])
            S.append(wdma(t, i))
        if hi == 7: S.append(wadv(t))
    def pf_w0(lo, hi):
        m = ((1 << min(3*hi, 64)) - 1) ^ ((1 << 3*lo) - 1)
        txt = f"global_load_dword v{VPFD}, v{VPF}, s[{SRD_US}:{SRD_US+1}]"
        if m != (1 << 64) - 1:
            txt = f"s_mov_b32 exec_lo, {hex(m & 0xffffffff)}\ns_mov_b32 exec_hi, {hex(m >> 32)}\n{txt}\ns_mov_b64 exec, -1"
        return I(txt, "G", wr=[f"v{VPFD}"])
    def pro_seq(seq):
        for e in seq:
            if e == 'pf': S.append(pf_w0(0, 22))
            elif e == 'pfa': S.append(pf_w0(*cfg.pfa))
            elif e == 'pfb': S.append(pf_w0(cfg.pfa[1], 22))
            elif e == 'u':
                A(f"s_mov_b32 s{SRD_UD}, s14\ns_mov_b32 s{SRD_UD+1}, s15")
                for k in range(8): S.append(unit_load(k, TT))
            elif e == 'us':
                S.append(Wait())
                S.extend([unit_perm(p, h, TT) for h in range(2) for p in range(4)] + [unit_store(h, TT) for h in range(2)])
            elif e == 'b0':
                A("s_mov_b32 m0, s96\ns_nop 0")
                S.append(I("global_load_lds_dword v14, s[8:9]", "G", wr=["Lb0"]))
            elif e == 'pb':
                A("s_lshr_b32 s42, s2, 3\ns_lshl_b32 s42, s42, 2\ns_add_u32 s42, s42, s16\ns_and_b32 s42, s42, 63\ns_min_u32 s42, s42, 38\ns_lshl_b32 s42, s42, 7\nv_mov_b32 v15, s42")
                S.append(I(f"global_load_dword v{VPFD}, v15, s[8:9]", "G", wr=[f"v{VPFD}"]))
            elif e == 'tw':
                A(f"v_and_b32 v15, 16, v{VL16}\nv_mul_u32_u24 v15, {(3<<20)//16}, v15\nv_add_u32 v15, {WOFF - 65536}, v15")
                S.append(I(f"global_load_dword v{VPFD}, v15, s[14:15]", "G", wr=[f"v{VPFD}"]))
            elif e == 'to':
                A(f"v_mov_b32 v15, s31")
                S.append(I(f"global_load_dword v{VPFD}, v15, s[10:11]", "G", wr=[f"v{VPFD}"]))
            elif e[0] == 'x': pro_x(int(e[1:]))
            elif e[0] == 'w' and ':' in e:
                t_, r_ = e[1:].split(':'); lo, hi = r_.split('-'); pro_w(int(t_), int(lo), int(hi))
            elif e[0] == 'w' and e[-1] == 'a': pro_w(int(e[1:-1]), 0, cfg.wsplit)
            elif e[0] == 'w' and e[-1] == 'b': pro_w(int(e[1:-1]), cfg.wsplit, 7)
            elif e[0] == 'w': pro_w(int(e[1:]))
            else: raise ValueError(e)
    def reads(t):
        b, sl = t % 2, slot(t)
        out = []
        def xr(r):
            d = XB(b, r)
            if r == 4: txt = f"v{VXOW if t % 2 else VXEW} offset:{(t//2)*4096}"
            else: txt = f"v{VXO if t % 2 else VXE} offset:{(t//2)*4096 + r*1024}"
            ins = I(f"ds_read_b128 {rng('a',d,4)}, {txt}", "D", rd=[txt.split()[0]], wr=regs('a',d,4)); ins.name = ({}, ('x0', t, r)); return ins
        def wr_(tt, p):
            d = WB(b, tt) + 2*p
            if tt >= 6: txt = f"v{VTR12B if sl >= 2 else VTR12} offset:{(sl%2)*STG + p*3328 + 8*(tt-6)}"
            else: txt = f"v{VTRB if sl >= 2 else VTR} offset:{(sl%2)*STG + p*3328 + (tt//2)*64 + 8*(tt%2)}"
            ins = I(f"ds_read_b64_tr_b16 {rng('a',d,2)}, {txt}", "D", wr=regs('a',d,2)); ins.name = ({}, ('w0', t, tt)); return ins
        out += [xr(4), wr_(6,0), wr_(6,1), wr_(7,0), wr_(7,1), wr_(0,0), wr_(0,1), xr(0), xr(1), xr(2), xr(3)]
        for tt in range(1, 6): out += [wr_(tt, 0), wr_(tt, 1)]
        return out
    def bar(t, extra=()):
        need = [f"Lw{t+1}"] + [f"Lxc{i}" for i in range(min(t+2, 12) + 1)] if t < 12 else []
        if t >= 0: need += [r for x in reads(t) for r in x.wr]
        return I("s_barrier", "BAR", rd=need + list(extra))
    for e in cfg.seq:
        if e in ('sa', 'sb', 'sc', 'sp'): dict(sa=setup_a, sb=setup_b, sc=setup_c, sp=setup_p)[e]()
        elif e == 'karg': do_karg()
        elif e == 'cq': do_cq()
        elif e == 'cu': do_cu()
        elif e == 'walk':
            A("s_mov_b64 exec, 0\ns_cmp_eq_u32 s16, 0\ns_cbranch_scc1 L_touch1\ns_cmp_eq_u32 s16, 1\ns_cbranch_scc1 L_touch2\ns_cmp_eq_u32 s16, 2\ns_cbranch_scc1 L_touch3\ns_branch L_touch4\n"
              "L_tnext1:\ns_branch L_touchs\nL_tnext2:\ns_branch L_touch5\nL_tnext3:\nL_tnext4:\nL_tnext5:\nL_tnexts:\ns_mov_b64 exec, -1")
        elif e.startswith('wait:'):
            S.append(Wait()); S.append(I("s_nop 0", "S", rd=[e[5:]])); stamp()
        elif e == 'st': stamp()
        elif e == 'rd0':
            S.append(Wait()); S.append(bar(-1)); stamp(); S.extend(reads(0))
        else: pro_seq([e])
    S.append(Wait()); S.append(bar(0))
    stamp()

    deferred = []
    for e in ('sc', 'sp'):
        if e not in cfg.seq:
            n0 = len(S); dict(sc=setup_c, sp=setup_p)[e](); deferred += S[n0:]; del S[n0:]
    N0 = 338
    NS = cfg.ns
    G0 = Gaps(N0 + 400)
    slot1 = {}
    M0 = []
    order = [(6, 4), (7, 4)]
    for tt in range(6): order += [(tt, r) for r in ([0,1,2,3] if tt % 2 == 0 else [3,2,1,0])]
    acc_done = {}
    for t in range(13):
        b = t % 2
        for (tt, r) in order:
            a = ACC0(tt, r); c = (CQ + 4*tt) if t == 0 else a
            ins = I(f"v_mfma_f32_16x16x32_bf16 {rng('v',a,4)}, {rng('a',WB(b,tt),4)}, {rng('a',XB(b,r),4)}, {rng('v',c,4)}", "M",
                    rd=regs('a',WB(b,tt),4)+regs('a',XB(b,r),4), wr=regs('v',a,4), srcc=regs('v',c,4))
            exp = {x: ('w0', t, tt) for x in regs('a',WB(b,tt),4)}; exp.update({x: ('x0', t, r) for x in regs('a',XB(b,r),4)})
            if t: exp.update({x: ('a0', tt, r) for x in regs('v',a,4)})
            ins.name = (exp, ('a0', tt, r))
            acc_done[(tt, r)] = len(M0)
            M0.append(ins)
    def put(ins, p, latest=None, after=()): return G0.place(ins, p, latest, after)
    def put1(ins, p):
        assert p not in slot1 and p % 26 != 25, p
        slot1[p] = ins; ins.pos = p
    def puts(ins, p, latest=None):
        lines = ins.text.split("\n")
        while any((p+i) in slot1 or (p+i) % 26 == 25 for i in range(len(lines))): p += 1
        for i, t in enumerate(lines):
            x = ins if i == len(lines) - 1 else R(t)
            x.text = t; put1(x, p + i)
        assert latest is None or ins.pos <= latest, (ins.text, ins.pos, latest)
        return ins
    wl = [x for x in pre if x.tag.cls in ('wload', 'wupd')]
    rest = [x for x in pre if x.tag.cls not in ('wload', 'wupd')]
    xq = [s for s in range(13) if f"x{s}" not in cfg.seq]
    x_issue = {s: -1 for s in range(13) if s not in xq}
    bars = {}; advs = []; xadvs = []
    for t in range(13):
        g0 = 26*t
        if t < 12:
            bars[t+1] = put(bar(t+1), g0 + 25, g0 + 25)
            rp = [q for q in range(25) if not (t + NS <= 12 and q == (cfg.dma_pos_x if xq else cfg.dma_pos)[6])]
            for i, x in enumerate(reads(t+1)): put(x, g0 + rp[i], g0 + rp[i])
        ev = []
        dp = cfg.dma_pos_x if xq else cfg.dma_pos
        if t + NS <= 12:
            ev += [(p, wm0(t+NS, i), wdma(t+NS, i), i) for i, p in enumerate(dp)]
            advs.append((g0, dp[6]))
        for p in cfg.x_pos:
            if xq:
                s = xq.pop(0); a, bb = xdma(s); ev.append((p, a, bb, None)); x_issue[s] = t
                assert s >= t + 3
                xadvs.append((g0 + p, s))
        cur = None; lastp = -2
        for p, m, ins, i in sorted(ev, key=lambda e: e[0]):
            if m.text != cur:
                assert p - 1 > lastp, (t, p)
                put1(m, g0 + p - 1); cur = m.text
            if i == 6:
                a, bb, c = ins.text.split("\n"); put1(R(a), g0 + p); ins.text = bb + "\n" + c
            put(ins, g0 + p, g0 + p); lastp = p
    assert not xq
    def put_adv(ins, p, latest):
        ln = ins.text.split("\n")
        for i in range(0, len(ln), 2):
            x = puts(R(ln[i] + "\n" + ln[i+1]), p, latest); p = x.pos + 1
    for g0, dl in advs: put_adv(wadv(g0 // 26 + NS), g0 + dl + 1, g0 + 26)
    g = 26*cfg.unit_step
    tt_free = 0
    if 'us' in cfg.seq: sig_t = cfg.sig_step
    else:
        bars[cfg.unit_step].rd += regs('v', TT, 8)
        pm = [put(unit_perm(p, h, TT), g) for h in range(2) for p in range(4)]
        st = [put(unit_store(h, TT), g + cfg.late, after=[(x, 1) for x in pm]) for h in range(2)]
        sig_t = st[1].pos // 26 + cfg.lag_st; tt_free = st[1].pos + 2
    bars[sig_t].rd.append("Mw")
    sig_steps = list(range(sig_t, min(sig_t + cfg.nB, 11) + 1))
    for t in sig_steps:
        x = puts(R(f"s_cmp_eq_u32 s{S_SIG}, {t}\ns_cbranch_scc1 L_sig{t}"), 26*t + cfg.sig_pos, 26*t + 24)
        x.text += f"\nL_sigret{t}:"
    nb_ = len(sig_steps) - 1
    sigsetup.text = (f"s_lshr_b32 s42, s2, 1\ns_mul_i32 s43, s42, {65536 // nb_ + 1}\ns_lshr_b32 s43, s43, 16\ns_mul_i32 s43, s43, {nb_}\ns_sub_u32 s42, s42, s43\ns_add_u32 s42, s42, {sig_t + 1}\n"
                     f"s_cmp_lt_u32 s2, 44\ns_cselect_b32 s42, {sig_t}, s42\ns_cselect_b32 s43, 0, 128\n"
                     f"s_cmp_lt_u32 s2, 212\ns_cselect_b32 s42, s42, 255\ns_cmp_eq_u32 s16, 0\ns_cselect_b32 s{S_SIG}, s42, 255\n"
                     f"s_and_b32 s42, s2, 1\ns_lshl_b32 s42, s42, 6\ns_add_u32 s42, s42, s43\nv_mov_b32 v{BIAS}, s42\nv_mov_b32 v{BIAS+1}, 1")
    assert all((u*(65536 // nb_ + 1)) >> 16 == u // nb_ for u in range(128))
    lines = [l for x in deferred for l in x.text.split("\n") if l]
    groups = []
    for l in lines:
        if l.startswith(("s_addc", "s_subb", "s_cselect")): groups[-1].append(l)
        else: groups.append([l])
    p = cfg.def_from; defpos = {}
    for gr in groups:
        if gr[0].startswith("v_"): x = put(Vv(gr[0]), p)
        else: x = puts(R("\n".join(gr)), p)
        for l in gr: defpos[l.split()[1].rstrip(",")] = x.pos
        p = x.pos + (0 if not gr[0].startswith("v_") and False else 1)
    if groups:
        assert defpos[f"v{BIAS+1}"] < 26*sig_steps[0] + cfg.sig_pos and defpos["s98"] < cfg.bt_from
        assert defpos[f'v{VPOLL}'] < 26*cfg.poll_step + cfg.late and p < 26*(cfg.poll_step + cfg.lag_poll), p
    pl = put(I(f"global_load_dword v{VPOLLD}, v{VPOLL}, s[12:13] sc1", "G", wr=[f"v{VPOLLD}"]), 26*cfg.poll_step + cfg.late)
    bars[cfg.poll_step + cfg.lag_poll].rd.append(f"v{VPOLLD}")
    ck = 26*(cfg.poll_step + cfg.lag_poll)
    c1 = put(Vv(f"v_cmp_gt_u32 vcc, 22, v{VPOLLD}", rd=[f"v{VPOLLD}"]), ck)
    br = puts(R("s_cbranch_vccnz L_wait1"), c1.pos + 2); br.text += "\nL_ok1:"
    pf1 = put(I(f"global_load_dword v{VPFD}, v{VPF}, s[{SPF}:{SPF+1}]{cfg.ldflag}", "G", wr=[f"v{VPFD}"]), max(br.pos, ck + cfg.pf1_off))
    puts(R(f"s_add_u32 s{SPF}, s{SPF}, {LAYER_B}\ns_addc_u32 s{SPF+1}, s{SPF+1}, 0"), pf1.pos + 1)
    p = max(cfg.wl_from, pf1.pos + 1); prev = None
    for x in wl:
        if x.vm:
            prev = put(x, max(p if prev is None else prev.pos + cfg.wl_step, 26*12 + 4 if x.kind == 'B' else 0), after=[(lastu, 0)] if prev is not None and lastu else [])
            lastu = None
        else:
            lastu = puts(x, prev.pos + 1)
    T0, T1, T2 = 160, 161, 162
    x = None
    for txt in [f"v_bfe_u32 v{T0}, v{VL16}, 6, 2", f"v_cmp_eq_u32 vcc, 3, v{T0}", f"v_add_u32 v{T1}, s97, v{T0}", f"v_mov_b32 v{T2}, 12",
                f"v_cndmask_b32 v{T1}, v{T1}, v{T2}, vcc", f"v_mov_b32 v{T2}, 0.5", f"v_cndmask_b32 v{BT_SC}, 1.0, v{T2}, vcc",
                f"v_mov_b32 v{T2}, s98", f"v_cndmask_b32 v{T2}, 0, v{T2}, vcc",
                f"v_lshl_add_u32 v{T2}, v{T0}, 7, v{T2}", f"v_and_b32 v{T0}, 48, v{VL16}", f"v_lshl_add_u32 v{T1}, v{T1}, 6, v{T0}",
                f"v_add3_u32 v{T2}, v{T2}, v{T0}, s99", f"v_lshrrev_b32 v{T0}, 8, v{VL16}", f"v_lshl_add_u32 v{BT_A0}, v{T0}, 9, v{T2}",
                f"v_mul_u32_u24 v{T0}, 832, v{T0}", f"v_add_u32 v{T0}, v{T0}, v{T1}"]:
        x = put(Vv(txt), cfg.bt_from if x is None else x.pos + 1)
    bl = [put(I(f"global_load_dwordx4 {rng('v',TT+8*rd+4,4)}, v{T0}, s[8:9] offset:{1664*rd}", "G", wr=regs('v',TT+8*rd+4,4)), max(x.pos + 1 + rd, tt_free, cfg.bl_from)) for rd in range(2)]
    tb = bl[1].pos // 26 + cfg.lag_bl
    bars[tb].rd += regs('v', TT+4, 4) + regs('v', TT+12, 4)
    u_ = []
    for rd in range(2):
        for q in range(4):
            lo, hi = TT+8*rd+q, TT+8*rd+4+q
            x = put(Vv(f"v_lshlrev_b32 v{lo}, 16, v{hi}", rd=[f"v{hi}"], wr=[f"v{lo}"]), 26*tb)
            y = put(Vv(f"v_and_b32 v{hi}, s{SMASK}, v{hi}", rd=[f"v{hi}"], wr=[f"v{hi}"]), x.pos)
            u_ += [put(Vv(f"v_mul_f32 v{r_}, v{BT_SC}, v{r_}", rd=[f"v{r_}"], wr=[f"v{r_}"]), y.pos) for r_ in (lo, hi)]
    x = None
    for h in range(2):
        for rd in range(2):
            x = put(I(f"ds_write_b128 v{BT_A0}, {rng('v',TT+8*rd+4*h,4)} offset:{1024*rd}", "X", rd=regs('v',TT+8*rd+4*h,4)), max(26*11, 0 if x is None else x.pos + 1), after=[(y, 1) for y in u_])
        if h == 0: x = put(Vv(f"v_xor_b32 v{BT_A0}, 64, v{BT_A0}"), x.pos + 1)
    y = put(Vv(f"v_and_b32 v{VBIAS}, 48, v{VBIAS}"), 26*2)
    put(Vv(f"v_add3_u32 v{VBIAS}, v{VBIAS}, s99, v{T0}"), put(Vv(f"v_mov_b32 v{T0}, 512"), max(y.pos, bl[1].pos + 1)).pos + 1)
    bt_last = x; bt_valu = max(y.pos for y in u_)
    assert bt_valu < c1.pos
    ux = []
    for j in range(3):
        for r in range(4):
            ux.append((10 + j, X0F(j, r, 0), f"v{VXOWN} offset:{r*1024}"))
    ux.append((12, X0S, f"v{VXEW} offset:24576"))
    prev = None; rds = []; unp = {}
    for (s, d, adr) in ux:
        tb = max(x_issue[s] + cfg.lag_x, 1)
        if f"Lxc{s}" not in bars[tb].rd: bars[tb].rd.append(f"Lxc{s}")
        e = max(26*tb, cfg.unpack_from, bt_valu + 1 if d == X0F(2, 3, 0) else 0)
        if len(rds) % 4 == 0 and len(rds) < 12:
            j = len(rds) // 4
            a_, b_ = (VXE, VXO) if j % 2 == 0 else (VXO, VXE)
            prev = put(Vv(f"v_cndmask_b32 v{VXOWN}, v{a_}, v{b_}, s[{S_PAR}:{S_PAR+1}]", wr=[f"v{VXOWN}"]), e - 4 if prev is None else prev.pos)
            prev = put(Vv(f"v_add_u32 v{VXOWN}, s{S_OWNX+j}, v{VXOWN}", wr=[f"v{VXOWN}"]), prev.pos)
            assert prev.pos > defpos.get(f"s[{S_PAR}:{S_PAR+1}]", 0) + 1
        rd = put(I(f"ds_read_b128 {rng('v',d+4,4)}, {adr}", "D", rd=[adr.split()[0]], wr=regs('v',d+4,4)), e, 26*12 - 2, after=[(prev, 1)] if prev else [])
        prev = rd; rds.append((rd, d)); bars[12].rd += regs('v', d+4, 4)
    for rd, d in rds:
        last = None
        for q in range(4):
            for h in range(2):
                txt = f"v_lshlrev_b32 v{d+2*q}, 16, v{d+4+q}" if h == 0 else f"v_and_b32 v{d+2*q+1}, s{SMASK}, v{d+4+q}"
                nb = rd.pos + 8
                last = put(Vv(txt, rd=[f"v{d+4+q}"], wr=[f"v{d+2*q+h}"]), nb, after=[(last, 0)] if last else [])
                unp[d] = last
    wr = []
    def ep(D0, D1, x0, e0, dst, adr, tag):
        f = []
        for e in range(8):
            a = (D0 + e) if e < 4 else (D1 + e - 4)
            if cfg.mul0:
                ee = max(e0[e // 4] + 3, unp[x0].pos + 1)
                probe = Vv("x"); q = ee
                while not G0.fits(q, probe): q += 1
                if cfg.pk0 and e % 2 == 0 and q >= N0:
                    f.append(put(Vv(f"v_pk_mul_f32 v[{a}:{a+1}], v[{x0+e}:{x0+e+1}], v[{a}:{a+1}]", rd=[f"v{a}", f"v{a+1}", f"v{x0+e}", f"v{x0+e+1}"], wr=[f"v{a}", f"v{a+1}"]), ee)); skip = True
                elif e % 2 == 1 and skip: skip = False
                else:
                    f.append(put(Vv(f"v_mul_f32 v{a}, v{x0+e}, v{a}", rd=[f"v{a}", f"v{x0+e}"], wr=[f"v{a}"]), ee)); skip = False
                continue
            f.append(put(Vv(f"v_fma_f32 v{a}, v{x0+e}, v{a}, v{x0+e}", rd=[f"v{a}", f"v{x0+e}"], wr=[f"v{a}"]), e0[e // 4] + 3, after=[(unp[x0], 1)]))
        last = None
        for q in range(4):
            a = (D0 + 2*q) if q < 2 else (D1 + 2*q - 4)
            c = Vv(f"v_cvt_pk_bf16_f32 v{dst+q}, v{a}, v{a+1}", rd=[f"v{a}", f"v{a+1}"], wr=[f"v{dst+q}"])
            if tag: c.name = ({}, tag)
            last = put(c, bt_last.pos + 1 if dst == TT else 0, after=[(x, 0) for x in f] + ([(last, 0)] if last else []))
        wr.append(put(I(f"ds_write_b128 {adr[0]}, {rng('v',dst,4)} offset:{adr[1]}", "X", rd=regs('v',dst,4), wr=["Lx1"]), 0, after=[(last, 1)]))
    ep(XS, XS+4, X0S, (acc_done[(6,4)], acc_done[(7,4)]), TT, (f"v{VS}", 0), None)
    for j in range(3):
        for r in (3, 2, 1, 0):
            ep(ACC0(2*j, r), ACC0(2*j+1, r), X0F(j, r, 0), (acc_done[(2*j, r)], acc_done[(2*j+1, r)]), XV(j, r), (f"v{VRD[0]}", (j*4+r)*1024), ('X', 1, (0, j), r))
    pl2 = put(I(f"global_load_dword v{VPOLLD}, v{VPOLL}, s[12:13] offset:128 sc1", "G", wr=[f"v{VPOLLD}"]), N0)
    assert min(x.pos for x in wl if x.kind == "B") >= max(26*12, bt_last.pos + 1)
    L0 = []
    lastg = max(p for p in range(G0.n) if G0.g[p])
    for p in range(lastg + 1):
        if p < N0: L0.append(M0[p])
        elif p == N0:
            L0.append(R("s_nop 3"))
            if cfg.st2: stamp(L0)
        if cfg.stamp and p < N0 and p % 26 == 0 and (p // 26) in cfg.stamp_steps: stamp(L0)
        if cfg.diag and cfg.diag[0] == 'step' and p == 26*cfg.diag[2]: L0.append(R("s_memrealtime s[92:93]\ns_waitcnt lgkmcnt(0)"))
        L0.append(slot1[p] if p in slot1 else Wait())
        L0 += G0.ordered(p)
    stamp(L0)
    L0.append(Wait()); L0.append(I("s_barrier", "BAR", rd=["Lx1"]))
    if cfg.st2: stamp(L0)
    L0 += rest
    def rdx(slot, r):
        p, b = xreg(slot, r)
        if slot == 12: txt = f"ds_read_b128 {rng(p,b,4)}, v{VRD12} offset:{r*1024}"
        else: txt = f"ds_read_b128 {rng(p,b,4)}, v{VRD[slot[0]]} offset:{(slot[1]*4+r)*1024}"
        ins = I(txt, "D", wr=regs(p,b,4)); ins.name = ({}, ('X', 1, slot, r)); return ins
    oth = []
    for x in body:
        if x.kind == "M" and x.layer == 1 and x.pos < 52:
            tg = [v for v in x.name[0].values() if v[0] == 'X'][0]
            if tg[2] == 12 or tg[2][0] != 0: oth.append(rdx(tg[2], tg[3]))
    for _ in range(cfg.first_reads): L0.append(oth.pop(0))
    L0.append(Wait())
    nb = []
    for k, x in enumerate(body):
        nb.append(x)
        if isinstance(x, Wait) and x.layer == 1:
            extra = []
            if oth: extra.append(oth.pop(0))
            if x.pos == cfg.chk2 + 1:
                extra.append(Vv(f"v_cmp_gt_u32 vcc, 84, v{VPOLLD}", rd=[f"v{VPOLLD}"]))
            if x.pos == cfg.chk2 + 4:
                extra.append(R("s_cbranch_vccnz L_wait2\nL_ok2:"))
            for e in extra: e.layer, e.pos = x.layer, x.pos
            nb += extra
    body = nb
    if cfg.tstore: body = transpose_stores(body, cfg)
    full = S + L0 + body
    insert_waits(full)
    init = {f"s{SOWN}": ('s',1,0), f"s{SOWN12}": ('s',1,0), f"s{STS}": ('s',1,'S'), f"s{SSPEC}": ('s',1), f"v{VBIAS}": ('vb',1)}
    i0 = len(S) + len(L0)
    fix = R(""); fix.wr = regs('v', XS, 8); fix.name = ({}, ('XS', 1))
    check_tags(full[:i0] + [fix] + full[i0:], init)
    SPLIT = cfg.split
    segs = {}
    for x in body: segs.setdefault(min(x.layer + (1 if x.pos >= SPLIT else 0), cfg.nlayers), []).append(x)
    loop = [segs[k] for k in range(2, cfg.nlayers)]
    for sg in loop[1:]:
        assert len(sg) == len(loop[0]) and all(a.text == b.text and a.kind == b.kind for a, b in zip(sg, loop[0]))
    for tup in zip(*loop):
        if isinstance(tup[0], Wait):
            vm = [w.vmn for w in tup if w.vmn is not None]; lg = [w.lgn for w in tup if w.lgn is not None]
            for w in tup:
                w.vmn = min(vm) if vm else None; w.lgn = min(lg) if lg else None
    verify_waits(full)
    fin = segs[cfg.nlayers]
    errs = check_hazards(full)
    assert not errs, errs
    out = [f".globl {KN}\n.p2align 8\n.type {KN},@function\n{KN}:"]
    out += render(S) + render(L0) + render(segs[1])
    if cfg.diag: out.append("s_memrealtime s[64:65]\ns_waitcnt lgkmcnt(0)")
    if cfg.loopalign: out.append(".p2align 6")
    out.append("L_loop:")
    if cfg.stamp:
        out.append(f"{TM} s[64:65]\ns_waitcnt lgkmcnt(0)\ns_sub_u32 s64, s64, s{T0R}\ns_sub_u32 m0, {nst[0]+3}, s{SCNT}\ns_nop 0\nv_writelane_b32 v0, s64, m0")
        nst[0] += 4
    out += render(loop[0])
    out.append(f"s_sub_u32 s{SCNT}, s{SCNT}, 1\ns_cbranch_scc0 L_loop")
    if cfg.stamp:
        t = []; stamp(t); out += render(t)
    fr = render(fin)
    if cfg.abl == 'nostore': fr = [t for t in fr if not t.startswith("global_store")]
    if cfg.abl == 'laststore':
        idx = [i for i, t in enumerate(fr) if t.startswith("global_store")][:-4]
        fr = [t for i, t in enumerate(fr) if i not in idx]
    if cfg.abl == 'quadstore':
        fr = [f"v_lshrrev_b32 v{VOUT}, 6, v{VL16}\nv_mul_u32_u24 v{VOUT}, 832, v{VOUT}\nv_and_b32 v{VOUT12}, 48, v{VL16}\nv_add_u32 v{VOUT}, v{VOUT}, v{VOUT12}\ns_mul_i32 s42, s16, 13312\ns_add_u32 s42, s42, 768\nv_add_u32 v{VOUT12}, s42, v{VOUT}\ns_mul_i32 s42, s16, 192\nv_add_u32 v{VOUT}, s42, v{VOUT}"] + fr
    out += fr
    if cfg.stamp:
        out.append("s_memtime s[66:67]\ns_waitcnt vmcnt(0)\ns_memtime s[68:69]\ns_memrealtime s[70:71]\ns_waitcnt lgkmcnt(0)")
        out.append("s_sub_u32 s66, s66, s60\ns_sub_u32 s68, s68, s60")
        out.append(f"v_writelane_b32 v0, s{S_TRY}, 0\nv_writelane_b32 v0, s66, 1\nv_writelane_b32 v0, s68, 2\nv_writelane_b32 v0, s62, 3\nv_writelane_b32 v0, s70, 4")
        out.append(f"s_lshl_b32 s42, s2, 2\ns_add_u32 s42, s42, s16\ns_lshl_b32 s42, s42, 7\ns_add_u32 s42, s42, {4<<20}")
        out.append(f"v_lshrrev_b32 v9, 2, v{VL16}\nv_add_u32 v9, s42, v9\ns_mov_b64 exec, 0xffffffff\nglobal_store_dword v9, v0, s[14:15]")
    if cfg.diag:
        kind, K = cfg.diag[:2]
        out.append("s_waitcnt vmcnt(0)\ns_memrealtime s[66:67]\ns_waitcnt lgkmcnt(0)")
        if kind == 'total': out.append("s_sub_u32 s68, s66, s62")
        elif kind == 'l0': out.append("s_sub_u32 s68, s64, s62")
        elif kind == 'main': out.append("s_sub_u32 s68, s66, s64")
        elif kind == 'spin': out.append("s_mul_i32 s68, s90, 100")
        elif kind == 'step': out.append("s_sub_u32 s68, s92, s62")
        elif kind in ('atom', 'spin1', 'spin2'): out.append("s_mov_b32 s68, s90")
        elif kind in ('skew',):
            out.append("s_not_b32 s69, s62\nv_mov_b32 v4, 32\nv_mov_b32 v5, s69\ns_mov_b64 exec, 1\nglobal_atomic_umax v4, v5, s[12:13] sc1\ns_waitcnt vmcnt(0)\ns_sleep 127\ns_sleep 127\ns_sleep 127\ns_sleep 127\nglobal_load_dword v6, v4, s[12:13] sc1\ns_waitcnt vmcnt(0)\nv_readfirstlane_b32 s69, v6\ns_not_b32 s69, s69\ns_sub_u32 s68, s62, s69\ns_memrealtime s[66:67]\ns_waitcnt lgkmcnt(0)")
        if cfg.diag_wg: out.append(f"s_cmp_ge_u32 s2, {cfg.diag_wg[0]}\ns_cselect_b32 s68, s68, 0\ns_cmp_lt_u32 s2, {cfg.diag_wg[1]}\ns_cselect_b32 s68, s68, 0")
        out.append(f"s_min_u32 s68, s68, 10000\ns_mul_i32 s68, s68, {K}")
        out.append("L_dspin:\ns_sleep 2\ns_memrealtime s[70:71]\ns_waitcnt lgkmcnt(0)\ns_sub_u32 s69, s70, s66\ns_cmp_lt_u32 s69, s68\ns_cbranch_scc1 L_dspin")
    out.append("s_endpgm")
    if 'walk' in cfg.seq: out.append("L_touchs:\ns_branch L_tnexts")
    pre_a = post_a = ""
    if cfg.diag and cfg.diag[0] == 'atom':
        pre_a = "s_waitcnt vmcnt(0)\ns_memrealtime s[92:93]\ns_waitcnt lgkmcnt(0)\n"
        post_a = "s_waitcnt vmcnt(0)\ns_memrealtime s[94:95]\ns_waitcnt lgkmcnt(0)\ns_sub_u32 s90, s94, s92\n"
    for t in sig_steps:
        out.append(f"L_sig{t}:\ns_mov_b64 exec, 1\n{pre_a}global_atomic_add v{BIAS}, v{BIAS+1}, s[12:13] sc1\n{post_a}s_mov_b64 exec, -1\ns_branch L_sigret{t}")
    for k, cmp_ in ((1, f"v_cmp_gt_u32 vcc, 22, v{VPOLLD}"), (2, f"v_cmp_gt_u32 vcc, 84, v{VPOLLD}")):
        out.append(f"""L_wait{k}:
s_mov_b32 s{S_RET}, {k}
s_mov_b32 s{S_TRY}, {cfg.tries}
L_spin{k}:
s_sub_u32 s{S_TRY}, s{S_TRY}, 1
s_cbranch_scc1 L_self
{"s_add_u32 s90, s90, 1" if cfg.diag and cfg.diag[0] == 'spin' else ("s_add_u32 s90, s90, 100" if cfg.diag and cfg.diag[0] == f'spin{k}' else "")}
s_sleep {cfg.psleep}
global_load_dword v{VPOLLD}, v{VPOLL}, s[12:13] offset:{128*(k-1)} sc1
s_waitcnt vmcnt(0)
{cmp_}
s_nop 4
s_cbranch_vccnz L_spin{k}
s_branch L_ok{k}""")
    fb = [f"L_self:\ns_cmp_eq_u32 s{S_RET}, 1\ns_cbranch_scc0 L_self2"] + [f"v_accvgpr_write_b32 a{112+i}, v{TT+i}" for i in range(16)]
    fb += [f"L_self2:\ns_mov_b32 s{SRD_US+2}, {6*LAYER_B}\ns_mov_b32 s{SRD_UD+2}, {WOFF + 6*LAYER_B}\ns_mov_b32 s17, 0\nL_selfloop:", unit_addr(17)]
    fb += [unit_load(e, TT).text for e in range(8)] + ["s_waitcnt vmcnt(0)"]
    fb += [unit_perm(p, h, TT).text for h in range(2) for p in range(4)] + [unit_store(h, TT).text for h in range(2)]
    fb.append(f"s_waitcnt vmcnt(0)\ns_add_u32 s17, s17, 1\ns_cmp_lt_u32 s17, {NUNIT}\ns_cbranch_scc1 L_selfloop")
    fb.append(f"s_cmp_eq_u32 s{S_RET}, 1\ns_cbranch_scc0 L_ok2")
    fb += [f"v_accvgpr_read_b32 v{TT+i}, a{112+i}" for i in range(16)] + ["s_branch L_ok1"]
    out += fb
    out.append("L_end:\ns_endpgm")
    info.update(sig_t=sig_t, l0_last=lastg, x_issue=x_issue)
    return "\n".join(out), info

def mix(xs, ws, ratio):
    out = []; acc = 0.0; wq = [f"w{t}:{i}-{i+1}" for t in ws for i in range(7)]
    for x in xs:
        out.append(f"x{x}"); acc += ratio
        while acc >= 1 and wq: out.append(wq.pop(0)); acc -= 1
    return out + wq

class C2(Cfg):
    stamp = False
    stamp_steps = tuple(range(1, 13))
    codepf = True
    xflag = ' nt'
    stflag = " nt"
    split = 54
    loopalign = True
    seq = ['karg','pf','b0'] + mix(range(7),[0],1) + ['sb','u','pb','sa','cq'] + mix(range(7,13),[1],1) + ['cu','rd0','us','w2','w3']
    pfa = (0, 5)
    wsplit = 2

    dma_pos = [1, 4, 7, 10, 13, 16, 19]
    x_pos = [21, 23]
    late = 22
    pagealign = True
    diag = None
    diag_wg = None
    psleep = 8
    st_pos = [160,190,220,250,262,274,286,298,310]
    tstore = True
    ts_lag = 6
    stflags = None
    mul0 = True
    pk0 = True
    st2 = False
    abl = None
    bt_from = 8
    bl_from = 26 + 20
    lag_bl = 3
    def_from = 0
    sig_pos = 20
    dma_pos_x = [1, 4, 7, 10, 13, 16, 19]
    ns = 4
    sig_step = 1
    lag_x = 3
    lag_st = 3
    lag_poll = 2
    pf1_off = 16
    nB = 7
    codepf_share = True
    unit_step = 1
    unpack_from = 26*5
    poll_step = 6
    wl_from = 26*9 + 1
    wl_step = 4
    first_reads = 8
    chk2 = 40
    tries = 20000

HEAD = """; DCN-v2 cross network, 6 layers, B=16384, D=416, bf16 (written out by my own scheduling script)
; Kernarg: x0, ws, bs, out, debug, workspace
"""
def gen(cfg):
    mk, info = main_kernel(cfg)
    txt = HEAD + f"; @launch grid=(256,1,1) block=(256,1,1) lds={LDS_BYTES}\n"
    txt += '.amdgcn_target "amdgcn-amd-amdhsa--gfx950"\n.text\n' + (".p2align 12\n" if cfg.pagealign else "") + mk + "\n"
    txt += '.section .rodata,"a"\n.p2align 6\n' + kd(KN, 512, 256)
    if 'walk' in cfg.seq:
        import touch
        txt = touch.add_touch(txt, 5)
    return txt, info

if __name__ == "__main__":
    cfg = C2()
    for a in sys.argv[2:]:
        k, v = a.split("=", 1); assert hasattr(cfg, k), k; setattr(cfg, k, eval(v))
    txt, info = gen(cfg)
    open(sys.argv[1], "w").write(txt)
    print(info, len(txt.splitlines()), "lines")
```
